```python
import torch

def _softmax(x, axis=-1):
    return torch.softmax(x, dim=axis)
def _gelu(x):
    return torch.nn.functional.gelu(x, approximate="tanh")
def _silu(x):
    return torch.nn.functional.silu(x)
def _sigmoid(x):
    return torch.sigmoid(x)
def _layernorm(x, axis=-1, eps=1e-5):
    m = x.mean(dim=axis, keepdim=True)
    v = x.var(dim=axis, keepdim=True, unbiased=False)
    return (x - m) / torch.sqrt(v + eps)
def _scatter_add(tgt, idx, src, axis=0):
    return tgt.clone().index_add_(axis, idx, src)
def _segment_sum(src, seg, n):
    out = torch.zeros((n,) + src.shape[1:], dtype=src.dtype)
    return out.index_add_(0, seg, src)
def _pad(x, pw):
    flat = tuple(v for pair in reversed(pw) for v in pair)
    return torch.nn.functional.pad(x, flat)

kernel_name = 'sequential_preLN__compressed_kv_cla__mixer_token_mlp__prompt'

def setup_inputs():

    _w = (lambda a: (lambda t: t.to(torch.bfloat16) if t.is_floating_point() else t)(torch.as_tensor(a)))
    def _A_setup():
        B, H, Sq, Sk, D, M = 1, 32, 2048, 2048, 128, 640
        Dc = 4 * D
        return {
            "x": _w((lambda *s: torch.randn(*s, dtype=torch.bfloat16) * 0.05)(B, Sq, M)),
            "c_kv": _w((lambda *s: torch.randn(*s, dtype=torch.bfloat16) * 0.2)(B, Sk, Dc)),
            "w_q": _w((lambda *s: torch.randn(*s, dtype=torch.bfloat16) * 3.2)(M, H, D) * (M ** -0.5)),
            "w_uk": _w((lambda *s: torch.randn(*s, dtype=torch.bfloat16) * 6.4)(Dc, H, D) * (Dc ** -0.5)),
            "w_uv": _w((lambda *s: torch.randn(*s, dtype=torch.bfloat16) * 0.2)(Dc, H, D) * (Dc ** -0.5)),
            "w_o": _w((lambda *s: torch.randn(*s, dtype=torch.bfloat16) * 0.2)(H, D, M) * ((H * D) ** -0.5)),
        }
    _A_in = _A_setup()

    def _B_setup():
        B, S, D, F = 1, 2048, 640, 1728
        return {
            "x": _w((lambda *s: torch.randn(*s, dtype=torch.bfloat16) * 0.05)(B, S, D)),
            "w1": _w((lambda *s: torch.randn(*s, dtype=torch.bfloat16) * 0.4)(S, F) * (S ** -0.5)),
            "b1": _w((lambda *s: torch.randn(*s, dtype=torch.bfloat16) * 3.2)(F) * 0.02),
            "w2": _w((lambda *s: torch.randn(*s, dtype=torch.bfloat16) * 0.2)(F, S) * (F ** -0.5)),
            "b2": _w((lambda *s: torch.randn(*s, dtype=torch.bfloat16) * 0.8)(S) * 0.02),
        }
    _B_in = _B_setup()

    return {
        "A_x": _A_in["x"],
        "A_c_kv": _A_in["c_kv"],
        "A_w_q": _A_in["w_q"],
        "A_w_uk": _A_in["w_uk"],
        "A_w_uv": _A_in["w_uv"],
        "A_w_o": _A_in["w_o"],
        "B_x": _B_in["x"],
        "B_w1": _B_in["w1"],
        "B_b1": _B_in["b1"],
        "B_w2": _B_in["w2"],
        "B_b2": _B_in["b2"],
    }

def reference(A_x, A_c_kv, A_w_q, A_w_uk, A_w_uv, A_w_o, B_x, B_w1, B_b1, B_w2, B_b2):
    def _A_ref(x, c_kv, w_q, w_uk, w_uv, w_o):
        B, Sq, M = x.shape[0], x.shape[1], x.shape[2]
        Sk = c_kv.shape[1]
        H, D = w_q.shape[1], w_q.shape[2]
        q = torch.einsum("bqm,mhd->bhqd", x, w_q)
        k = torch.einsum("bkc,chd->bhkd", c_kv, w_uk)
        v = torch.einsum("bkc,chd->bhkd", c_kv, w_uv)
        scores = torch.einsum("bhqd,bhkd->bhqk", q, k) * (D ** -0.5)
        off = Sk - Sq
        qi = torch.arange(Sq)[:, None]
        kj = torch.arange(Sk)[None, :]
        cmask = kj <= (qi + off)
        scores = torch.where(cmask[None, None], scores, -1e9)
        p = _softmax(scores, axis=-1)
        ctx = torch.einsum("bhqk,bhkd->bhqd", p, v)
        return torch.einsum("bhqd,hdm->bqm", ctx, w_o)

    def _B_ref(x, w1, b1, w2, b2):
        B, S, D = x.shape
        h = _layernorm(x, axis=-1)
        u = torch.einsum("bsd,sf->bdf", h, w1) + b1
        u = _gelu(u)
        y = torch.einsum("bdf,fs->bds", u, w2) + b2
        return (lambda x, *d: x.permute(*d))(y, 0, 2, 1)

    x = A_x
    h = x + _A_ref(_layernorm(x, axis=-1), A_c_kv, A_w_q, A_w_uk, A_w_uv, A_w_o)
    h2 = h + _B_ref(_layernorm(h, axis=-1), B_w1, B_b1, B_w2, B_b2)
    return h2
```

```python
NAME = "sequential_preLN__compressed_kv_cla__mixer_token_mlp__prompt"
KA_X, KA_CKV, KA_WQ, KA_WUK, KA_WUV, KA_WO, KA_BX, KA_W1, KA_B1, KA_W2, KA_B2, KA_OUT, KA_DBG, KA_WS = [8*i for i in range(14)]
MB = 1 << 20
OPT = {}
WS_XN   = 0
WS_KT   = 4*MB
WS_VT   = 20*MB
WS_CTX  = 36*MB
WS_PART = 52*MB
WS_H    = 96*MB
WS_HN   = 100*MB
WS_U    = 104*MB
SZ_X = 2048*640*2

class Asm:
    def __init__(self):
        self.lines = []
        self.vm = []
    def __call__(self, s):
        self.lines.append("    " + s)
    def label(self, l):
        self.lines.append(l + ":")
    def comment(self, s):
        self.lines.append("    ; " + s)
    def vmem(self, s, tag):
        self(s); self.vm.append(tag)
    def vm_count_for(self, tags):
        last = -1
        for i, t in enumerate(self.vm):
            if t in tags: last = i
        n = len(self.vm) - 1 - last
        self.vm = self.vm[last+1:]
        return n if last >= 0 else None
    def wait_vm(self, tags, extra=""):
        n = self.vm_count_for(tags)
        if n is None:
            if extra: self("s_waitcnt " + extra)
            return
        assert n <= 63
        self(("s_waitcnt vmcnt(%d) " % n + extra).strip())
    def srd(self, d, lo, hi, size, add=0):
        if add:
            self(f"s_add_u32 s{d}, s{lo}, {add}")
            self(f"s_addc_u32 s{d+1}, s{hi}, 0")
            self(f"s_and_b32 s{d+1}, s{d+1}, 0xffff")
        else:
            self(f"s_mov_b32 s{d}, s{lo}")
            self(f"s_and_b32 s{d+1}, s{hi}, 0xffff")
        self(f"s_mov_b32 s{d+2}, {size}")
        self(f"s_mov_b32 s{d+3}, 0x00020000")
    def stamp(self, k):
        if OPT.get("stamp") == k:
            i = getattr(self, "nst", 0); self.nst = i + 1
            self(f"s_memtime s[{70+2*i}:{71+2*i}]")
    def stamp_out(self, k, wslo, wave):
        if OPT.get("stamp") == k:
            self("s_waitcnt vmcnt(0) lgkmcnt(0)")
            self.stamp(k)
            self("s_waitcnt lgkmcnt(0)")
            self.srd(64, wslo, wslo+1, 1*MB, add=120*MB)
            self(f"s_lshl_b32 s68, s2, 3"); self(f"s_add_u32 s68, s68, s{wave}"); self("s_lshl_b32 s68, s68, 6")
            self("v_mov_b32 v0, 0")
            for i in range(self.nst):
                self(f"v_mov_b32 v1, s{70+2*i}")
                self(f"buffer_store_dword v1, v0, s[64:67], s68 offen offset:{4*i}")
    def text(self):
        return "\n".join(self.lines) + "\n"

def kernel_header(name):
    return f".globl {name}\n.p2align 8\n.type {name},@function\n{name}:\n"

def kernel_desc(name, vgpr, sgpr=102, accum=None):
    if accum is None: accum = (vgpr + 3)//4*4
    return f""".p2align 6
.amdhsa_kernel {name}
  .amdhsa_next_free_vgpr {vgpr}
  .amdhsa_next_free_sgpr {sgpr}
  .amdhsa_accum_offset {accum}
  .amdhsa_group_segment_fixed_size 0
  .amdhsa_kernarg_size 112
  .amdhsa_user_sgpr_count 2
  .amdhsa_user_sgpr_kernarg_segment_ptr 1
  .amdhsa_system_sgpr_workgroup_id_x 1
  .amdhsa_float_denorm_mode_32 3
.end_amdhsa_kernel
"""

def vr(b, n): return f"v[{b}:{b+n-1}]"

def interleave(a, mfmas, fillers, first_gap=0, per_gap=None):
    nf = len(fillers); nm = len(mfmas)
    if per_gap is None:
        per_gap = -(-nf // max(1, nm - first_gap))
    fi = 0
    for i, m in enumerate(mfmas):
        a(m)
        if i >= first_gap:
            for _ in range(per_gap):
                if fi < nf:
                    f = fillers[fi]; fi += 1
                    f() if callable(f) else a(f)
    while fi < nf:
        f = fillers[fi]; fi += 1
        f() if callable(f) else a(f)

def wave_sum(a, v, tmp, s0):
    a("s_nop 1")
    a(f"v_add_f32_dpp {v}, {v}, {v} quad_perm:[1,0,3,2] row_mask:0xf bank_mask:0xf")
    a("s_nop 1")
    a(f"v_add_f32_dpp {v}, {v}, {v} quad_perm:[2,3,0,1] row_mask:0xf bank_mask:0xf")
    a("s_nop 1")
    a(f"v_add_f32_dpp {v}, {v}, {v} row_half_mirror row_mask:0xf bank_mask:0xf")
    a("s_nop 1")
    a(f"v_add_f32_dpp {v}, {v}, {v} row_mirror row_mask:0xf bank_mask:0xf")
    a("s_nop 1")
    for i in range(4):
        a(f"v_readlane_b32 s{s0+i}, {v}, {16*i}")
    a("s_nop 1")
    a(f"v_mov_b32 {v}, s{s0}")
    for i in range(1, 4):
        a(f"v_add_f32 {v}, s{s0+i}, {v}")

def bf16r(a, dst, src, tmp=None):
    a(f"v_cvt_pk_bf16_f32 {dst}, {src}, {src}")
    a(f"v_and_b32 {dst}, 0xffff0000, {dst}")
```

```python
from common import *
from k2 import hexf, CSCALE
K1_LDS = 160*1024
A_SLOT = [0, 32768, 65536]
W_SLOT = [98304 + 16384*i for i in range(4)]

def gen_k1():
    a = Asm()
    a("s_cmp_ge_u32 s2, 256")
    a("s_cbranch_scc1 K1_END")
    a.stamp("1")
    a(f"s_load_dwordx4 s[4:7], s[0:1], {KA_X}")
    a(f"s_load_dwordx4 s[8:11], s[0:1], {KA_WUK}")
    a(f"s_load_dwordx2 s[12:13], s[0:1], {KA_WS}")
    a("v_and_b32 v1, 63, v0")
    a("v_lshrrev_b32 v2, 6, v0")
    a("s_nop 0")
    a("v_readfirstlane_b32 s14, v2")
    a("s_and_b32 s15, s2, 7")
    a("s_lshr_b32 s16, s2, 3")
    a("s_and_b32 s17, s16, 7")
    a("s_lshr_b32 s18, s16, 3")
    a("s_lshl_b32 s19, s15, 2")
    a("s_add_u32 s18, s18, s19")
    a("s_and_b32 s19, s18, 15")
    a("s_waitcnt lgkmcnt(0)")
    a.srd(20, 4, 5, SZ_X)
    a.srd(24, 6, 7, 2048*512*2)
    a("s_cmp_lt_u32 s18, 16")
    a("s_cselect_b32 s8, s8, s10")
    a("s_cselect_b32 s9, s9, s11")
    a(f"s_cselect_b32 s3, 0, {WS_VT - WS_KT}")
    a(f"s_or_b32 s3, s3, {WS_KT}")
    a.srd(28, 8, 9, 512*4096*2)
    a.srd(32, 12, 13, SZ_X, add=WS_XN)
    a("s_add_u32 s36, s12, s3")
    a("s_addc_u32 s37, s13, 0")
    a("s_and_b32 s37, s37, 0xffff")
    a(f"s_mov_b32 s38, {16*MB}")
    a("s_mov_b32 s39, 0x00020000")
    a("s_lshl_b32 s40, s2, 3")
    a("s_add_u32 s40, s40, s14")
    a("s_mul_i32 s41, s40, 1280")
    a("v_lshlrev_b32 v3, 5, v1")
    a("v_add_u32 v3, s41, v3")
    a("v_cmp_gt_u32 vcc, 40, v1")
    a("v_mov_b32 v4, 0x80000000")
    a("s_nop 0")
    a("v_cndmask_b32 v3, v4, v3, vcc")
    a.vmem("buffer_load_dwordx4 v[8:11], v3, s[20:23], 0 offen", "x")
    a.vmem("buffer_load_dwordx4 v[12:15], v3, s[20:23], 0 offen offset:16", "x")
    VA = [200, 201, 202, 203]; VW = [204, 205]
    a("v_lshrrev_b32 v5, 3, v1")
    a("s_lshl_b32 s42, s17, 8")
    a("s_lshl_b32 s43, s14, 5")
    a("s_add_u32 s42, s42, s43")
    a("v_add_u32 v5, s42, v5")
    a("v_lshlrev_b32 v5, 10, v5")
    a("v_lshrrev_b32 v6, 4, v1")
    a("v_and_b32 v7, 7, v1")
    for p in range(4):
        a(f"v_xor_b32 v16, {(4*p)&7}, v6")
        a("v_xor_b32 v16, v16, v7")
        a("v_lshl_add_u32 v16, v16, 4, v5")
        a(f"v_add_u32 v{VA[p]}, {p*8*1024 - p*1024}, v16")
    a("v_lshrrev_b32 v5, 5, v1")
    a("v_and_b32 v6, 31, v1")
    a("s_lshl_b32 s43, s14, 2")
    a("s_lshl_b32 s44, s19, 9")
    for p in range(2):
        a(f"v_add_u32 v7, {2*p}, v5")
        a("v_lshlrev_b32 v16, 2, v7")
        a("v_xor_b32 v16, v16, v6")
        a("v_add_u32 v7, s43, v7")
        a("v_lshlrev_b32 v7, 13, v7")
        a("v_lshl_add_u32 v16, v16, 4, v7")
        a("v_add_u32 v16, s44, v16")
        a(f"v_add_u32 v{VW[p]}, {-p*1024 & 0xffffffff}, v16")
    a("s_lshl_b32 s45, s14, 12")
    a("s_lshl_b32 s46, s14, 11")
    def dma_A(t):
        def f():
            a(f"s_add_u32 m0, s45, {A_SLOT[t%3]}")
            a(f"s_mov_b32 s47, {t*128}")
            for p in range(4):
                a.vmem(f"buffer_load_dwordx4 v{VA[p]}, s[24:27], s47 offen offset:{p*1024} lds", f"A{t}")
        return f
    def dma_W(j):
        def f():
            a(f"s_add_u32 m0, s46, {W_SLOT[j%4]}")
            a(f"s_mov_b32 s48, {j*32*8192}")
            for p in range(2):
                a.vmem(f"buffer_load_dwordx4 v{VW[p]}, s[28:31], s48 offen offset:{p*1024} lds", f"W{j}")
        return f
    dma_A(0)(); dma_W(0)(); dma_W(1)()
    late = {0: [dma_A(1)], 1: [dma_W(2), dma_W(3)], 3: [dma_A(2)]}
    RA = [206, 207, 208, 209]; RW = [210, 211]
    a("v_and_b32 v5, 31, v1")
    a("v_lshrrev_b32 v6, 5, v1")
    a("v_bfe_u32 v7, v1, 1, 3")
    a("v_xor_b32 v7, v7, v6")
    a("s_lshr_b32 s49, s14, 2")
    a("s_and_b32 s50, s14, 3")
    a("s_lshl_b32 s51, s49, 14")
    a("v_lshlrev_b32 v5, 7, v5")
    a("v_add_u32 v5, s51, v5")
    for ks in range(4):
        a(f"v_xor_b32 v16, {2*ks}, v7")
        a(f"v_lshl_add_u32 v{RA[ks]}, v16, 4, v5")
    a("v_bfe_u32 v5, v1, 2, 2")
    a("v_lshrrev_b32 v6, 5, v1")
    a("v_lshl_add_u32 v6, v6, 3, v5")
    a("v_lshlrev_b32 v6, 9, v6")
    a("v_bfe_u32 v7, v1, 4, 1")
    a("v_lshl_add_u32 v6, v7, 5, v6")
    a("v_and_b32 v7, 3, v1")
    a("v_lshl_add_u32 v6, v7, 3, v6")
    a("s_lshr_b32 s51, s50, 1")
    a("s_lshl_b32 s51, s51, 8")
    a(f"s_add_u32 s51, s51, {W_SLOT[0]}")
    a("v_add_u32 v6, s51, v6")
    a("s_and_b32 s51, s50, 1")
    a("s_lshl_b32 s51, s51, 1")
    for nb in range(2):
        a(f"s_add_u32 s52, s51, {nb}")
        a("v_xor_b32 v7, s52, v5")
        a(f"v_lshl_add_u32 v{RW[nb]}, v7, 6, v6")
    def ln(a):
        pass
        for i in range(8):
            a(f"v_lshlrev_b32 v{220+2*i}, 16, v{8+i}")
            a(f"v_and_b32 v{221+2*i}, 0xffff0000, v{8+i}")
        a("v_add_f32 v236, v220, v221")
        for i in range(2, 16): a(f"v_add_f32 v236, v236, v{220+i}")
        wave_sum(a, "v236", "v237", 56)
        a(f"v_mul_f32 v236, {1.0/640}, v236")
        a("v_sub_f32 v237, v220, v236")
        a("v_mul_f32 v238, v237, v237")
        for i in range(1, 16):
            a(f"v_sub_f32 v237, v{220+i}, v236")
            a("v_fmac_f32 v238, v237, v237")
        a("v_cndmask_b32 v238, 0, v238, vcc")
        wave_sum(a, "v238", "v237", 56)
        a(f"v_mul_f32 v238, {1.0/640}, v238")
        bf16r(a, "v238", "v238")
        a("v_add_f32 v238, 0x3727c5ac, v238")
        bf16r(a, "v238", "v238")
        a("v_sqrt_f32 v238, v238")
        a("s_nop 0")
        bf16r(a, "v238", "v238")
        a("v_rcp_f32 v238, v238")
        bf16r(a, "v236", "v236")
        for i in range(0, 16, 2):
            a(f"v_sub_f32 v{220+i}, v{220+i}, v236")
            a(f"v_sub_f32 v{221+i}, v{221+i}, v236")
            a(f"v_cvt_pk_bf16_f32 v237, v{220+i}, v{221+i}")
            a(f"v_lshlrev_b32 v{220+i}, 16, v237")
            a(f"v_and_b32 v{221+i}, 0xffff0000, v237")
            a(f"v_mul_f32 v{220+i}, v{220+i}, v238")
            a(f"v_mul_f32 v{221+i}, v{221+i}, v238")
            a(f"v_cvt_pk_bf16_f32 v{8+i//2}, v{220+i}, v{221+i}")
        a("s_lshr_b32 s41, s40, 5")
        a("s_mul_i32 s41, s41, 40960")
        a("s_and_b32 s42, s40, 31")
        a("s_lshl_b32 s42, s42, 4")
        a("s_add_u32 s41, s41, s42")
        a("v_lshlrev_b32 v3, 10, v1")
        a("v_add_u32 v3, s41, v3")
        a("v_cndmask_b32 v3, v4, v3, vcc")
        a("buffer_store_dwordx4 v[8:11], v3, s[32:35], 0 offen")
        a("buffer_store_dwordx4 v[12:15], v3, s[32:35], 0 offen offset:512")
    la = Asm(); ln(la)
    lnops = [l.strip() for l in la.lines]
    a.stamp("1"); nst0 = getattr(a, "nst", 0)
    a("v_lshlrev_b32 v212, 4, v1")
    a("s_cmp_lt_u32 s18, 16")
    a("s_cbranch_scc0 K1_V")
    vm_save = list(a.vm)
    for typ in range(2):
        a.vm = list(vm_save); a.nst = nst0
        if typ == 1: a.label("K1_V")
        ACC = lambda mb, nb: 64 + (mb*2+nb)*16
        FA = lambda buf, mb: 16 + buf*24 + mb*4
        FW = lambda buf, nb: 16 + buf*24 + 16 + nb*4
        def reads(n):
            t, ks = n // 4, n % 4
            j, k2 = n // 2, n % 2
            buf = n % 2
            r = []
            for nb in range(2):
                for r2 in range(2):
                    off = W_SLOT[j % 4] - W_SLOT[0] + (16*k2 + 4*r2)*512
                    r.append(f"ds_read_b64_tr_b16 {vr(FW(buf, nb)+2*r2, 2)}, v{RW[nb]} offset:{off}")
            for mb in range(4):
                off = A_SLOT[t % 3] + mb*4096
                if t % 3 == 2:
                    r.append(("big", mb, ks, buf))
                else:
                    r.append(f"ds_read_b128 {vr(FA(buf, mb), 4)}, v{RA[ks]} offset:{off}")
            out = []
            for x in r:
                if isinstance(x, tuple):
                    _, mb, ks_, buf_ = x
                    out.append(f"ds_read_b128 {vr(FA(buf_, mb), 4)}, v{RA2[ks_]} offset:{mb*4096}")
                else: out.append(x)
            return out
        RA2 = [213, 214, 215, 216]
        for ks in range(4):
            a(f"v_add_u32 v{RA2[ks]}, 0x10000, v{RA[ks]}")
        def mfmas(n):
            buf = n % 2
            m = []
            for mb in range(4):
                for nb in range(2):
                    c = vr(ACC(mb, nb), 16)
                    cin = "0" if n == 0 else c
                    fa, fw = vr(FA(buf, mb), 4), vr(FW(buf, nb), 4)
                    if typ == 0: m.append(f"v_mfma_f32_32x32x16_bf16 {c}, {fw}, {fa}, {cin}")
                    else:        m.append(f"v_mfma_f32_32x32x16_bf16 {c}, {fa}, {fw}, {cin}")
            return m
        NS = 32
        lno = list(lnops)
        for n in range(NS + 1):
            fill = []
            if n < NS:
                if n % 2 == 0:
                    j = n // 2; t = j // 2
                    a.wait_vm([f"A{t}", f"W{j}"], "lgkmcnt(0)")
                    a("s_barrier")
                    if n % 4 == 0: a.stamp("1")
                    fill += reads(n)
                    if j >= 1 and j + 3 < 16: fill.append(dma_W(j + 3))
                    if j % 2 == 0 and t >= 1 and t + 2 < 8: fill.append(dma_A(t + 2))
                else:
                    a("s_waitcnt lgkmcnt(0)")
                    fill += reads(n)
            else:
                a("s_waitcnt lgkmcnt(0)")
            fill += late.get(n, [])
            if n >= 6:
                for x in lno[:7]:
                    if x.startswith("buffer_store"): fill.append((lambda x: lambda: a.vmem(x, "xs"))(x))
                    else: fill.append(x)
                lno = lno[7:]
            if n == 0:
                for f in fill: f() if callable(f) else a(f)
            else:
                interleave(a, mfmas(n - 1)[:1 if OPT.get("k1_nomfma") else 8], fill, per_gap=2)
        assert not lno
        a.stamp("1")
        a("s_nop 7"); a("s_nop 7")
        a("s_lshl_b32 s53, s19, 1")
        a("s_lshr_b32 s54, s50, 1")
        a("s_add_u32 s53, s53, s54")
        a("s_lshl_b32 s53, s53, 19")
        a("s_lshl_b32 s54, s17, 16")
        a("s_add_u32 s53, s53, s54")
        a("s_lshl_b32 s54, s49, 15")
        a("s_add_u32 s53, s53, s54")
        a("s_and_b32 s54, s50, 1")
        if typ == 0:
            a("s_lshl_b32 s54, s54, 12")
        else:
            a("s_lshl_b32 s54, s54, 11")
        a("s_add_u32 s53, s53, s54")
        k = 0
        a(f"s_mov_b32 s56, {hexf(CSCALE)}")
        for mb in range(4):
            for nb in range(2):
                for t in range(2):
                    src = ACC(mb, nb) + 8*t
                    d = 16 + (k % 8)*4; k += 1
                    for i in range(4):
                        if typ == 0:
                            a(f"v_mul_f32 v{src+2*i}, s56, v{src+2*i}")
                            a(f"v_mul_f32 v{src+2*i+1}, s56, v{src+2*i+1}")
                        a(f"v_cvt_pk_bf16_f32 v{d+i}, v{src+2*i}, v{src+2*i+1}")
                    if typ == 0: off = (mb >> 1)*16384 + (mb & 1)*8192 + (2*nb + t)*1024
                    else:        off = (mb >> 1)*16384 + (2*(mb & 1) + t)*4096 + nb*1024
                    a(f"s_add_u32 s55, s53, {off}")
                    if not OPT.get("k1_nostore"): a(f"buffer_store_dwordx4 {vr(d, 4)}, v212, s[36:39], s55 offen")
        a.stamp_out("1", 12, 14)
        a("s_endpgm")
    a.label("K1_END")
    a("s_endpgm")
    return a.text()
```

```python
from common import *
import math, struct
K2_LDS = 160*1024
CSCALE = (128 ** -0.5) * math.log2(math.e)
THR = 8.0
O0, Q0, SB, P0, FR, NEGM = 0, 64, [96, 128], 160, 176, 208
vL, vMX, vT0, vT1, vK, vV, vLANE16, vQI = 224, 225, 226, 227, 228, 229, 230, 231
VE = [232 + i for i in range(8)]
VW = [240, 241]
RW = [242, 243, 244, 245]
tL, t5, t6, t7 = 248, 249, 250, 251
vL2 = 246
WOFF = 48*1024
VBASE = 96*1024
def hexf(x): return "0x%08x" % struct.unpack("<I", struct.pack("<f", x))[0]

def gen_k2(D=8):
    a = Asm()
    a("s_cmp_ge_u32 s2, 256")
    a("s_cbranch_scc1 K2_END")
    a.stamp("2")
    a(f"s_load_dwordx2 s[4:5], s[0:1], {KA_WQ}")
    a(f"s_load_dwordx2 s[6:7], s[0:1], {KA_WS}")
    a(f"v_and_b32 v{tL}, 63, v0")
    a(f"v_lshrrev_b32 v{t5}, 6, v0")
    a("s_nop 0")
    a(f"v_readfirstlane_b32 s14, v{t5}")
    a("s_and_b32 s15, s2, 7")
    a("s_lshl_b32 s15, s15, 2")
    a("s_bfe_u32 s16, s2, 0x20003")
    a("s_add_u32 s15, s15, s16")
    a("s_lshr_b32 s16, s2, 5")
    a("s_sub_u32 s17, 15, s16")
    a("s_lshl_b32 s18, s17, 1")
    a("s_add_u32 s18, s18, 2")
    a("s_cmp_ge_u32 s14, 4")
    a("s_cselect_b32 s19, s16, s17")
    a("s_cselect_b32 s60, 1, 0")
    a("s_lshl_b32 s61, s19, 1")
    a("s_add_u32 s61, s61, 2")
    a("s_and_b32 s62, s14, 3")
    a("s_lshl_b32 s63, s19, 2")
    a("s_add_u32 s63, s63, s62")
    a(f"v_lshlrev_b32 v{vLANE16}, 4, v{tL}")
    a(f"v_lshrrev_b32 v{t5}, 4, v{tL}")
    a(f"v_lshlrev_b32 v{t6}, 2, v{t5}")
    a(f"v_and_b32 v{t7}, 15, v{tL}")
    a(f"v_xor_b32 v{t6}, v{t6}, v{t7}")
    a("s_lshl_b32 s40, s14, 3")
    a(f"v_add_u32 v{t5}, s40, v{t5}")
    a(f"v_lshlrev_b32 v{t5}, 13, v{t5}")
    a(f"v_lshl_add_u32 v{t5}, v{t6}, 4, v{t5}")
    a("s_lshl_b32 s40, s15, 8")
    a(f"v_add_u32 v{VW[0]}, s40, v{t5}")
    a(f"v_add_u32 v{VW[1]}, {4*8192 - 1024}, v{VW[0]}")
    a("s_lshl_b32 s41, s14, 11")
    a("s_mul_i32 s42, s63, 40960")
    a("s_lshl_b32 s43, s15, 19")
    a("s_add_u32 s44, s43, s41")
    a("s_lshl_b32 s45, s62, 12")
    a("s_add_u32 s46, s43, s45")
    a("s_waitcnt lgkmcnt(0)")
    a.srd(20, 4, 5, 640*4096*2)
    a.srd(24, 6, 7, SZ_X, add=WS_XN)
    a.srd(28, 6, 7, 16*MB, add=WS_KT)
    a.srd(32, 6, 7, 16*MB, add=WS_VT)
    a.srd(36, 6, 7, 16*MB, add=WS_CTX)
    def dma_W(t):
        def f():
            a(f"s_add_u32 m0, s41, {WOFF + (t % 4)*16384}")
            a(f"s_mov_b32 s47, {t*64*8192}")
            for p in range(2):
                a.vmem(f"buffer_load_dwordx4 v{VW[p]}, s[20:23], s47 offen offset:{p*1024} lds", f"W{t}")
        return f
    def ld_x(n):
        def f():
            a(f"s_add_u32 s48, s42, {n*1024}")
            a.vmem(f"buffer_load_dwordx4 {vr((n % 16)*4, 4)}, v{vLANE16}, s[24:27], s48 offen", f"X{n}")
        return f
    def dma_KV(kind, j):
        def f():
            lds = (j % 4)*16384 if kind == "K" else VBASE + ((j + 2) % 4)*16384
            srd = "s[28:31]" if kind == "K" else "s[32:35]"
            a(f"s_add_u32 m0, s41, {lds}")
            a(f"s_add_u32 s47, s44, {j*16384}")
            for p in range(2):
                a.vmem(f"buffer_load_dwordx4 v{vLANE16}, {srd}, s47 offen offset:{p*1024} lds", "KV")
        return f
    dma_W(0)()
    for n in range(4): ld_x(n)()
    dma_W(1)()
    for n in range(4, 6): ld_x(n)()
    late = {0: [ld_x(6), ld_x(7), dma_W(2), ld_x(8), ld_x(9)], 1: [ld_x(10), ld_x(11), dma_W(3)], 2: [ld_x(12), ld_x(13)], 3: [ld_x(14), ld_x(15)]}
    a(f"v_bfe_u32 v{t5}, v{tL}, 2, 2")
    a(f"v_lshrrev_b32 v{t6}, 5, v{tL}")
    a(f"v_lshl_add_u32 v{t6}, v{t6}, 3, v{t5}")
    a(f"v_lshlrev_b32 v{t6}, 8, v{t6}")
    a(f"v_bfe_u32 v{t7}, v{tL}, 4, 1")
    a(f"v_lshl_add_u32 v{t6}, v{t7}, 5, v{t6}")
    a(f"v_and_b32 v{t7}, 3, v{tL}")
    a(f"v_lshl_add_u32 v{t6}, v{t7}, 3, v{t6}")
    a(f"v_add_u32 v{t6}, {WOFF}, v{t6}")
    for db in range(4):
        a(f"v_xor_b32 v{t7}, {db}, v{t5}")
        a(f"v_lshl_add_u32 v{RW[db]}, v{t7}, 6, v{t6}")
    a(f"v_and_b32 v{t5}, 31, v{tL}")
    a(f"v_lshrrev_b32 v{t6}, 5, v{tL}")
    a(f"v_lshlrev_b32 v{t6}, 2, v{t6}")
    a(f"v_sub_u32 v{t5}, v{t5}, v{t6}")
    a("s_lshl_b32 s40, s63, 5")
    a(f"v_add_u32 v{vQI}, s40, v{t5}")
    QA = lambda db: 96 + db*16
    FWq = lambda buf, db: 176 + buf*16 + db*4
    def readsA(n):
        t, ks, buf = n // 4, n % 4, n % 2
        return [f"ds_read_b64_tr_b16 {vr(FWq(buf, db) + 2*r2, 2)}, v{RW[db]} offset:{(t % 4)*16384 + (16*ks + 4*r2)*256}"
                for db in range(4) for r2 in range(2)]
    def mfA(n):
        buf = n % 2
        return [f"v_mfma_f32_32x32x16_bf16 {vr(QA(db), 16)}, {vr(FWq(buf, db), 4)}, {vr((n % 16)*4, 4)}, {'0' if n == 0 else vr(QA(db), 16)}"
                for db in range(4)]
    kvpro = [dma_KV("K", 0), dma_KV("K", 1), dma_KV("V", 0), dma_KV("K", 2), dma_KV("V", 1)]
    for n in range(41):
        fill = []
        tags = [f"X{n-1}"] if n >= 1 else []
        if n < 40 and n % 4 == 0:
            t = n // 4
            a.wait_vm(tags + [f"W{t}"], "lgkmcnt(0)")
            a("s_barrier")
            if n % 8 == 0: a.stamp("2")
            fill += readsA(n)
            if t >= 1 and t + 3 < 10: fill.append(dma_W(t + 3))
        else:
            a.wait_vm(tags, "lgkmcnt(0)")
            if n < 40: fill += readsA(n)
        fill += late.get(n, [])
        if n >= 2 and n - 2 + 16 < 40: fill.append(ld_x(n - 2 + 16))
        if n % 4 == 2 and kvpro and n >= 6: fill.append(kvpro.pop(0))
        if n == 0:
            for f in fill: f() if callable(f) else a(f)
        else:
            interleave(a, mfA(n - 1), fill, per_gap=3)
    assert not kvpro
    a("s_waitcnt vmcnt(0)")
    a("s_barrier")
    a.vm = []
    a.stamp("2"); a("s_waitcnt lgkmcnt(0)")
    def dma_stage():
        a("s_add_u32 s65, s64, 1")
        a("s_and_b32 s66, s65, 3")
        a("s_lshl_b32 s66, s66, 14")
        a("s_add_u32 m0, s66, s45")
        a("s_lshl_b32 s65, s65, 14")
        a("s_add_u32 s65, s65, s46")
        for p in range(4):
            a(f"buffer_load_dwordx4 v{vLANE16}, s[28:31], s65 offen offset:{p*1024} lds")
        a("s_add_u32 s66, s64, 2")
        a("s_and_b32 s66, s66, 3")
        a("s_lshl_b32 s66, s66, 14")
        a("s_add_u32 s66, s66, s45")
        a(f"s_add_u32 m0, s66, {VBASE}")
        a("s_sub_u32 s65, s65, 16384")
        for p in range(4):
            a(f"buffer_load_dwordx4 v{vLANE16}, s[32:35], s65 offen offset:{p*1024} lds")
    FLAG = 80*1024
    def kread(slot, n, vaddr): return f"ds_read_b128 {vr(FR + 4*(slot % 8), 4)}, v{vaddr} offset:{n*1024}"
    def qk(buf, n, cin):
        kb, st = n // 8, n % 8
        d = vr(SB[buf] + 16*kb, 16)
        c = cin if st == 0 else d
        return f"v_mfma_f32_32x32x16_bf16 {d}, {vr(FR + 4*(n % 8), 4)}, {vr(Q0 + 4*st, 4)}, {c}"
    def pv(n):
        c, db = n // 4, n % 4
        d = vr(O0 + 16*db, 16)
        return f"v_mfma_f32_32x32x16_bf16 {d}, {vr(FR + 4*(n % 8), 4)}, {vr(P0 + 4*c, 4)}, {d}"
    SP = [56, 58, 92, 94]
    def mask_ops(buf):
        out = [f"s_lshl_b32 s67, s54, 6", f"v_subrev_u32 v{vT1}, s67, v{vQI}", f"v_mov_b32 v{vT0}, s52"]
        for kb in range(2):
            for r0 in range(0, 16, 4):
                for r in range(r0, r0 + 4):
                    out.append(f"v_cmp_le_i32 s[{SP[r & 3]}:{SP[r & 3]+1}], {32*kb + 8*(r >> 2) + (r & 3)}, v{vT1}")
                for r in range(r0, r0 + 4):
                    sreg = SB[buf] + 16*kb + r
                    out.append(f"v_cndmask_b32 v{sreg}, v{vT0}, v{sreg}, s[{SP[r & 3]}:{SP[r & 3]+1}]")
        return out
    def max_ops(buf):
        s = SB[buf]
        ops = [f"v_max3_f32 v{vMX}, v{s}, v{s+1}, v{s+2}", f"v_max3_f32 v{vT0}, v{s+3}, v{s+4}, v{s+5}"]
        k = 6; tog = 0
        while k + 1 < 32:
            d = vMX if tog == 0 else vT0
            ops.append(f"v_max3_f32 v{d}, v{d}, v{s+k}, v{s+k+1}"); k += 2; tog ^= 1
        ops += [f"v_max_f32 v{vMX}, v{vMX}, v{vT0}", f"v_mov_b32 v{vT0}, v{vMX}", "s_nop 1",
                f"v_permlane32_swap_b32 v{vMX}, v{vT0}", f"v_max_f32 v{vMX}, v{vMX}, v{vT0}"]
        return ops
    def chunk_ops(buf, c):
        s = SB[buf] + 8*c
        ops = []
        for i in range(0, 8, 2):
            ops.append(f"v_exp_f32 v{VE[i]}, v{s+i}")
            ops.append(f"v_exp_f32 v{VE[i+1]}, v{s+i+1}")
            if i >= 2:
                ops.append(f"v_add_f32 v{vL}, v{vL}, v{VE[i-2]}")
                ops.append(f"v_cvt_pk_bf16_f32 v{P0 + 4*c + i//2 - 1}, v{VE[i-2]}, v{VE[i-1]}")
                ops.append(f"v_add_f32 v{vL2}, v{vL2}, v{VE[i-1]}")
        ops.append(f"v_add_f32 v{vL}, v{vL}, v{VE[6]}")
        ops.append(f"v_cvt_pk_bf16_f32 v{P0 + 4*c + 3}, v{VE[6]}, v{VE[7]}")
        ops.append(f"v_add_f32 v{vL2}, v{vL2}, v{VE[7]}")
        return ops
    def spread(ops, g0, g1, sched):
        cost = [8 if o.startswith("v_exp") else 4 for o in ops]
        tot = sum(cost); acc = 0
        for o, c in zip(ops, cost):
            sched[g0 + min(g1 - g0 - 1, int((acc + c/2) * (g1 - g0) / tot))].append(o); acc += c
    def sync_and_load(tagl):
        def f():
            a("s_add_u32 s64, s51, 2")
            a("s_cmp_lt_u32 s64, s18")
            a(f"s_cbranch_scc1 {tagl}_w8")
            a("s_waitcnt vmcnt(0)")
            a.label(f"{tagl}_w8")
            a("s_waitcnt vmcnt(8)")
            a("s_barrier")
        def g():
            a("s_cmp_eq_u32 s60, 0")
            a(f"s_cbranch_scc1 {tagl}_nl")
            a("s_add_u32 s64, s51, 3")
            a("s_cmp_ge_u32 s64, s18")
            a(f"s_cbranch_scc1 {tagl}_nl")
            if not OPT.get("k2_nodma"): dma_stage()
            a.label(f"{tagl}_nl")
        return f, g
    def updK():
        a("s_add_u32 s55, s51, 2"); a("s_and_b32 s55, s55, 3"); a("s_lshl_b32 s55, s55, 14")
        a(f"v_add_u32 v{vK}, s55, v{vLANE16}")
    def updV():
        a("s_add_u32 s55, s51, 3"); a("s_and_b32 s55, s55, 3"); a("s_lshl_b32 s55, s55, 14")
        a(f"s_add_u32 s55, s55, {VBASE}")
        a(f"v_add_u32 v{vV}, s55, v{vLANE16}")
    WS4 = OPT.get("k2_w2") is None
    def lwait(n):
        if WS4:
            if n % 4 == 0: a("s_waitcnt lgkmcnt(4)")
        elif n % 2 == 0: a("s_waitcnt lgkmcnt(6)")
    def body(name, cur, kind, safe):
        nxt = cur ^ 1
        a.label(name)
        f_sync, g_load = sync_and_load(name)
        if kind != 'L':
            sched = {n: [] for n in range(32)}
            ch = [chunk_ops(cur, c) for c in range(4)]
            v2 = []
            if kind == 'M': v2 += ["s_add_u32 s54, s51, 1"] + mask_ops(nxt)
            if safe: v2 += max_ops(nxt)
            if v2:
                spread(ch[0] + ch[1] + ch[2], 0, 16, sched)
                spread(ch[3], 16, 22, sched)
                spread(v2, 22, 32, sched)
            else:
                spread(ch[0] + ch[1] + ch[2] + ch[3], 0, 27, sched)
            for n in range(16):
                lwait(n)
                a(qk(nxt, n, vr(NEGM, 16)))
                a(kread(n, n + 8, vK) if n < 8 else kread(n, n - 8, vV))
                for x in sched[n]: a(x)
                if n == 8: updK()
            for n in range(16):
                lwait(n)
                if n == 8: f_sync()
                a(pv(n))
                if n < 8: a(kread(n, n + 8, vV))
                elif name.endswith("M0"): a(kread(n, n - 8, vV))
                else: a(kread(n, n - 8, vK))
                if n == 7: updV()
                if n == 12: g_load()
                for x in sched[16 + n]: a(x)
            if safe:
                a(f"v_cmp_lt_f32 vcc, s53, v{vMX}")
                a("s_add_u32 s51, s51, 1")
                a(f"s_cbranch_vccnz {name}_RS")
                a.label(f"{name}_RET")
            else: a("s_add_u32 s51, s51, 1")
        else:
            for x in chunk_ops(cur, 0): a(x)
            rest = [chunk_ops(cur, 1), chunk_ops(cur, 2), chunk_ops(cur, 3), []]
            a("s_nop 0")
            for n in range(16):
                if n < 8:
                    if n % 2 == 0: a("s_waitcnt lgkmcnt(6)")
                else: a(f"s_waitcnt lgkmcnt({15 - n})")
                if n == 8: f_sync()
                a(pv(n))
                if n < 8: a(kread(n, n + 8, vV))
                if n == 12: g_load()
                v = rest[n // 4]; q = n % 4
                per = -(-len(v) // 4)
                for x in v[q*per:(q+1)*per]: a(x)
                if q == 3: a("s_nop 1")
            a("s_add_u32 s51, s51, 1")
    def fbody(name, cur, kind, ph, role):
        nxt = cur ^ 1
        a.label(name)
        def kr(slot, fr, t): return f"ds_read_b128 {vr(FR + 4*(slot % 8), 4)}, v{vLANE16} offset:{((ph + t) & 3)*16384 + fr*1024}"
        def vrd(slot, fr, t): return f"ds_read_b128 {vr(FR + 4*(slot % 8), 4)}, v{vV} offset:{((ph + t + 2) & 3)*16384 + fr*1024}"
        def sync():
            if role == 'L': a("s_waitcnt vmcnt(8)")
            a("s_barrier")
        dm = {n: [] for n in range(16)}
        if role == 'L' and kind != 'L' and not OPT.get("k2_nodma"):
            dm[8].append(f"s_add_u32 m0, s45, {(ph & 3)*16384}")
            for p in range(4):
                dm[8 + p].append(f"buffer_load_dwordx4 v{vLANE16}, s[28:31], s96 offen offset:{p*1024} lds")
                dm[12 + p].append(f"buffer_load_dwordx4 v{vLANE16}, s[32:35], s97 offen offset:{p*1024} lds")
            dm[11].append(f"s_add_u32 m0, s45, {VBASE + ((ph + 1) & 3)*16384}")
            dm[15] += ["s_mov_b32 s97, s96", "s_add_u32 s96, s96, 16384"]
            dm[8].insert(1, "s_nop 0")
        if kind != 'L':
            sched = {n: [] for n in range(32)}
            ch = [chunk_ops(cur, c) for c in range(4)]
            if kind == 'M':
                spread(ch[0] + ch[1] + ch[2], 0, 16, sched)
                spread(ch[3], 16, 22, sched)
                spread(["s_add_u32 s54, s51, 1"] + mask_ops(nxt), 22, 32, sched)
            else:
                spread(ch[0] + ch[1] + ch[2] + ch[3], 0, 27, sched)
            for n in range(16):
                lwait(n)
                a(qk(nxt, n, vr(NEGM, 16)))
                a(kr(n, n + 8, 1) if n < 8 else vrd(n, n - 8, 0))
                for x in sched[n]: a(x)
            for n in range(16):
                lwait(n)
                if n == 8: sync()
                a(pv(n))
                if n < 8: a(vrd(n, n + 8, 0))
                elif kind == 'M' and cur == 0: a(vrd(n, n - 8, 1))
                else: a(kr(n, n - 8, 2))
                for x in dm[n]: a(x)
                for x in sched[16 + n]: a(x)
            a("s_add_u32 s51, s51, 1")
        else:
            f_sync, g_load = sync_and_load(name)
            for x in chunk_ops(cur, 0): a(x)
            rest = [chunk_ops(cur, 1), chunk_ops(cur, 2), chunk_ops(cur, 3), []]
            a("s_nop 0")
            for n in range(16):
                if n < 8:
                    if n % 2 == 0: a("s_waitcnt lgkmcnt(6)")
                else: a(f"s_waitcnt lgkmcnt({15 - n})")
                if n == 8: sync()
                a(pv(n))
                if n < 8: a(vrd(n, n + 8, 0))
                if n == 12 and role == 'L': g_load()
                v = rest[n // 4]; q = n % 4
                per = -(-len(v) // 4)
                for x in v[q*per:(q+1)*per]: a(x)
                if q == 3: a("s_nop 1")
            a("s_add_u32 s51, s51, 1")
    def floop(P, role):
        P = P + role
        fbody(f"{P}_U0", 0, 'U', 0, role)
        a("s_cmp_ge_u32 s51, s49")
        a(f"s_cbranch_scc1 {P}_M1a")
        fbody(f"{P}_U1", 1, 'U', 1, role)
        fbody(f"{P}_U2", 0, 'U', 2, role)
        a("s_cmp_ge_u32 s51, s49")
        a(f"s_cbranch_scc1 {P}_M1b")
        fbody(f"{P}_U3", 1, 'U', 3, role)
        a(f"s_branch {P}_U0")
        fbody(f"{P}_M1a", 1, 'M', 1, role)
        fbody(f"{P}_M0a", 0, 'M', 2, role)
        fbody(f"{P}_L1a", 1, 'L', 3, role)
        a("s_branch K2F_EPI")
        fbody(f"{P}_M1b", 1, 'M', 3, role)
        fbody(f"{P}_M0b", 0, 'M', 0, role)
        fbody(f"{P}_L1b", 1, 'L', 1, role)
        if role == 'L': a("s_branch K2F_EPI")
    def rescale(name, nxt):
        a.label(f"{name}_RS")
        a("s_nop 7"); a("s_nop 7")
        a(f"v_max_f32 v{vMX}, 0, v{vMX}")
        a(f"v_sub_f32 v{vT0}, 0, v{vMX}")
        a(f"v_exp_f32 v{vT0}, v{vT0}")
        for i in range(32): a(f"v_sub_f32 v{SB[nxt]+i}, v{SB[nxt]+i}, v{vMX}")
        for i in range(16): a(f"v_sub_f32 v{NEGM+i}, v{NEGM+i}, v{vMX}")
        for i in range(64): a(f"v_mul_f32 v{O0+i}, v{O0+i}, v{vT0}")
        a(f"v_mul_f32 v{vL}, v{vL}, v{vT0}")
        a(f"v_mul_f32 v{vL2}, v{vL2}, v{vT0}")
        a("s_nop 1")
        a(f"s_branch {name}_RET")
    def attn(P, safe):
        a("s_cmp_eq_u32 s60, 0")
        a(f"s_cbranch_scc1 {P}_NOS2")
        a("s_mov_b32 s64, 2")
        dma_stage()
        a.label(f"{P}_NOS2")
        for n in range(8): a(kread(n, n, vLANE16))
        if not safe:
            for db in range(4):
                for t in range(2):
                    for i in range(4):
                        r = QA(db) + 8*t + 2*i
                        a(f"v_cvt_pk_bf16_f32 v{Q0 + (2*db + t)*4 + i}, v{r}, v{r+1}")
            a(f"v_mov_b32 v{vT0}, 0")
            a(f"v_mov_b32 v{vT1}, {FLAG}")
            a(f"ds_write_b32 v{vT1}, v{vT0}")
        a(f"v_add_u32 v{vK}, 16384, v{vLANE16}")
        a(f"v_add_u32 v{vV}, {VBASE + 2*16384}, v{vLANE16}")
        a("s_mov_b32 s51, 0")
        a(f"s_mov_b32 s52, {hexf(-1e30)}")
        a(f"s_mov_b32 s53, {hexf(THR)}")
        a("s_waitcnt lgkmcnt(0)")
        zero = [f"v_mov_b32 v{O0+i}, 0" for i in range(64)] + [f"v_mov_b32 v{vL}, 0", f"v_mov_b32 v{vL2}, 0"]
        for n in range(16):
            if n >= 8: a(f"s_waitcnt lgkmcnt(7)")
            a(qk(0, n, "0"))
            a(kread(n, n + 8, vLANE16) if n < 8 else kread(n, n - 8, vK))
            for x in zero[4*n:4*n+4]: a(x)
        for x in zero[64:]: a(x)
        a("s_mov_b32 s54, 0")
        a("s_nop 7"); a("s_nop 3")
        a("s_cmp_eq_u32 s61, 2")
        a(f"s_cbranch_scc0 {P}_NOM")
        for x in mask_ops(0): a(x)
        a.label(f"{P}_NOM")
        for x in max_ops(0): a(x)
        for i in range(16): a(f"v_sub_f32 v{NEGM+i}, 0, v{vMX}")
        for i in range(32): a(f"v_sub_f32 v{SB[0]+i}, v{SB[0]+i}, v{vMX}")
        if OPT.get("stamp") == "2" and not safe: a.stamp("2"); a("s_waitcnt lgkmcnt(0)")
        a("s_sub_u32 s49, s61, 3")
        if safe:
            a("s_cmp_eq_u32 s61, 2")
            a(f"s_cbranch_scc1 {P}_M0")
            body(f"{P}_U0", 0, 'U', safe)
            a("s_cmp_ge_u32 s51, s49")
            a(f"s_cbranch_scc1 {P}_M1")
            body(f"{P}_U1", 1, 'U', safe)
            a(f"s_branch {P}_U0")
            body(f"{P}_M1", 1, 'M', safe)
            body(f"{P}_M0", 0, 'M', safe)
            body(f"{P}_L1", 1, 'L', safe)
        else:
            a(f"v_add_u32 v{vV}, {VBASE}, v{vLANE16}")
            a("s_add_u32 s96, s46, 65536")
            a("s_add_u32 s97, s46, 49152")
            a("s_cmp_eq_u32 s60, 0")
            a(f"s_cbranch_scc1 {P}H_U0")
            a("s_cmp_eq_u32 s61, 2")
            a(f"s_cbranch_scc1 {P}L_M0b")
            floop(P, 'L'); floop(P, 'H')
            a.label("K2F_EPI")
        if not safe: a.stamp("2")
        a(f"v_add_f32 v{vL}, v{vL}, v{vL2}")
        a(f"v_mov_b32 v{vT0}, v{vL}")
        a("s_nop 1")
        a(f"v_permlane32_swap_b32 v{vL}, v{vT0}")
        a(f"v_add_f32 v{vL}, v{vL}, v{vT0}")
        a(f"v_mov_b32 v{vMX}, v{vL}")
        a(f"v_rcp_f32 v{vL}, v{vL}")
        a("s_lshl_b32 s55, s63, 18")
        a("s_lshl_b32 s56, s15, 13")
        a("s_add_u32 s55, s55, s56")
        a("s_nop 7")
        for db in range(4):
            for t in range(2):
                d = 96 + (2*db + t)*4
                for i in range(4):
                    r = O0 + 16*db + 8*t + 2*i
                    if not safe:
                        a(f"v_add_f32 v{vMX}, v{vMX}, |v{r}|")
                        a(f"v_add_f32 v{vMX}, v{vMX}, |v{r+1}|")
                    a(f"v_mul_f32 v{r}, v{r}, v{vL}")
                    a(f"v_mul_f32 v{r+1}, v{r+1}, v{vL}")
                    a(f"v_cvt_pk_bf16_f32 v{d+i}, v{r}, v{r+1}")
                if (2*db + t) % 4 == 0 and (2*db + t): a("s_add_u32 s55, s55, 4096")
                a(f"buffer_store_dwordx4 {vr(d, 4)}, v{vLANE16}, s[36:39], s55 offen offset:{((2*db + t) % 4)*1024}")
        if not safe:
            a(f"v_mov_b32 v{vT0}, {hexf(2.0**100)}")
            a(f"v_cmp_nlt_f32 vcc, v{vMX}, v{vT0}")
            a("s_nop 1")
            a(f"s_cbranch_vccz {P}_LD")
            a(f"v_mov_b32 v{vT0}, 1")
            a(f"v_mov_b32 v{vT1}, {FLAG}")
            a(f"ds_write_b32 v{vT1}, v{vT0}")
        a.label(f"{P}_LD")
        a("s_cmp_ge_u32 s51, s18")
        a(f"s_cbranch_scc1 {P}_FIN")
        f_sync, g_load = sync_and_load(f"{P}_LDX")
        f_sync(); g_load()
        a("s_add_u32 s51, s51, 1")
        a(f"s_branch {P}_LD")
        if safe:
            rescale(f"{P}_U0", 1); rescale(f"{P}_U1", 0); rescale(f"{P}_M1", 0); rescale(f"{P}_M0", 1)
        a.label(f"{P}_FIN")
    attn("K2F", False)
    a(f"v_mov_b32 v{vT1}, {FLAG}")
    a("s_waitcnt lgkmcnt(0)")
    a("s_barrier")
    a(f"ds_read_b32 v{vT0}, v{vT1}")
    a("s_waitcnt lgkmcnt(0)")
    a(f"v_readfirstlane_b32 s55, v{vT0}")
    a.stamp_out("2", 6, 14)
    a("s_cmp_eq_u32 s55, 0")
    a("s_cbranch_scc1 K2_END")
    for f in [dma_KV("K", 0), dma_KV("K", 1), dma_KV("V", 0), dma_KV("K", 2), dma_KV("V", 1)]: f()
    a("s_waitcnt vmcnt(0)")
    a("s_barrier")
    attn("K2S", True)
    a.label("K2_END")
    a("s_endpgm")
    return a.text()
```

```python
from common import *
K3_LDS = 160*1024
PART_SPLIT = 64*40*1024
def gen_k3():
    a = Asm()
    a("s_cmp_ge_u32 s2, 256")
    a("s_cbranch_scc1 K3_END")
    a.stamp("3")
    a(f"s_load_dwordx2 s[4:5], s[0:1], {KA_WO}")
    a(f"s_load_dwordx2 s[6:7], s[0:1], {KA_WS}")
    L, T0, T1, T2, LN16 = 248, 249, 250, 251, 252
    RD = [253, 254, 255, 247]
    VD = [123+i for i in range(5)]
    a(f"v_and_b32 v{L}, 63, v0")
    a(f"v_lshrrev_b32 v{T0}, 6, v0")
    a("s_nop 0")
    a(f"v_readfirstlane_b32 s14, v{T0}")
    a("s_and_b32 s15, s2, 7")
    a("s_bfe_u32 s16, s2, 0x20003")
    a("s_lshr_b32 s17, s2, 5")
    a("s_lshl_b32 s18, s17, 3")
    a("s_add_u32 s18, s18, s14")
    a(f"v_lshlrev_b32 v{LN16}, 4, v{L}")
    a("s_mul_i32 s19, s16, 320")
    a("s_mul_i32 s40, s14, 16*1280")
    a("s_add_u32 s19, s19, s40")
    a("s_movk_i32 s41, 3277")
    a("s_movk_i32 s42, 1280")
    for p in range(5):
        a(f"v_add_u32 v{T0}, {64*p}, v{L}")
        a(f"v_mul_u32_u24 v{T1}, s41, v{T0}")
        a(f"v_lshrrev_b32 v{T1}, 16, v{T1}")
        a(f"v_mul_u32_u24 v{T2}, 20, v{T1}")
        a(f"v_sub_u32 v{T0}, v{T0}, v{T2}")
        a(f"v_mul_u32_u24 v{T1}, s42, v{T1}")
        a(f"v_lshl_add_u32 v{T0}, v{T0}, 4, v{T1}")
        a(f"v_add_u32 v{T0}, s19, v{T0}")
        a(f"v_add_u32 v{VD[p]}, {(-(p % 4)*1024) & 0xffffffff}, v{T0}")
    a("s_mul_i32 s43, s14, 5120")
    a("s_mul_i32 s44, s15, 512*1280")
    a("s_lshl_b32 s45, s18, 18")
    a("s_lshl_b32 s46, s15, 15")
    a("s_add_u32 s45, s45, s46")
    a("s_waitcnt lgkmcnt(0)")
    a.srd(20, 4, 5, 4096*640*2)
    a.srd(24, 6, 7, 16*MB, add=WS_CTX)
    a.srd(28, 6, 7, 8*PART_SPLIT, add=WS_PART)
    def dma_W(st):
        def f():
            a(f"s_add_u32 m0, s43, {st*40960}")
            a(f"s_add_u32 s47, s44, {st*128*1280}")
            for p in range(4):
                a.vmem(f"buffer_load_dwordx4 v{VD[p]}, s[20:23], s47 offen offset:{p*1024} lds", f"W{st}")
            a(f"s_add_u32 m0, s43, {st*40960 + 4096}")
            a("s_nop 0")
            a.vmem(f"buffer_load_dwordx4 v{VD[4]}, s[20:23], s47 offen lds", f"W{st}")
        return f
    def ld_x(n):
        def f():
            a(f"s_add_u32 s48, s45, {n*1024}")
            a.vmem(f"buffer_load_dwordx4 {vr(4*n, 4)}, v{LN16}, s[24:27], s48 offen", f"X{n}")
        return f
    XA = int(OPT.get("k3_xa", 6))
    dma_W(0)()
    for n in range(XA): ld_x(n)()
    late = {0: [dma_W(1)], 5: [dma_W(2)], 12: [dma_W(3)]}
    xn = [XA]
    a.stamp("3")
    a(f"v_bfe_u32 v{T0}, v{L}, 2, 2")
    a(f"v_lshrrev_b32 v{T1}, 5, v{L}")
    a(f"v_lshl_add_u32 v{T0}, v{T1}, 2, v{T0}")
    a(f"v_mul_u32_u24 v{T0}, 320, v{T0}")
    a(f"v_bfe_u32 v{T1}, v{L}, 4, 1")
    a(f"v_lshl_add_u32 v{T0}, v{T1}, 5, v{T0}")
    a(f"v_and_b32 v{T1}, 3, v{L}")
    a(f"v_lshl_add_u32 v{RD[0]}, v{T1}, 3, v{T0}")
    for st in range(1, 4): a(f"v_add_u32 v{RD[st]}, {st*40960}, v{RD[0]}")
    ACC = lambda mb: 128 + 16*mb
    FW = lambda buf, mb: 208 + buf*20 + mb*4 if not (buf == 1 and mb == 4) else 244
    FW = lambda buf, mb: 208 + (buf*5 + mb)*4
    RD[3] = T2
    a(f"v_add_u32 v{RD[3]}, {3*40960}, v{RD[0]}")
    def reads(n):
        st, k = n // 8, n % 8
        return [f"ds_read_b64_tr_b16 {vr(FW(n % 2, mb) + 2*r2, 2)}, v{RD[st]} offset:{(16*k + 8*r2)*320 + 64*mb}"
                for mb in range(5) for r2 in range(2)]
    def mf(n):
        return [f"v_mfma_f32_32x32x16_bf16 {vr(ACC(mb), 16)}, {vr(FW(n % 2, mb), 4)}, {vr(4*n, 4)}, {'0' if n == 0 else vr(ACC(mb), 16)}"
                for mb in range(5)]
    for n in range(33):
        tags = [f"X{n-1}"] if n else []
        fill = []
        if n < 32 and n % 8 == 0:
            a.wait_vm(tags + [f"W{n//8}"], "lgkmcnt(0)")
            a("s_barrier")
            a.stamp("3")
        else:
            a.wait_vm(tags, "lgkmcnt(0)")
        if n < 32: fill = reads(n)
        for _ in range(2):
            if xn[0] < (30 if n <= 12 else 32): fill.append(ld_x(xn[0])); xn[0] += 1
        fill += late.get(n, [])
        if n == 0:
            for f in fill: f() if callable(f) else a(f)
        else: interleave(a, mf(n - 1)[:1 if OPT.get("k3_nomfma") else 5], fill, per_gap=3)
    a("s_nop 7"); a("s_nop 7")
    a.stamp("3")
    a(f"s_mul_i32 s49, s15, {PART_SPLIT}")
    a("s_mul_i32 s50, s18, 40960")
    a("s_add_u32 s49, s49, s50")
    a("s_mul_i32 s50, s16, 10240")
    a("s_add_u32 s49, s49, s50")
    for mb in range(5):
        for t in range(2):
            i8 = 2*mb + t
            d = 4*i8
            for i in range(4):
                r = ACC(mb) + 8*t + 2*i
                a(f"v_cvt_pk_bf16_f32 v{d+i}, v{r}, v{r+1}")
            if i8 % 4 == 0 and i8: a("s_add_u32 s49, s49, 4096")
            if not OPT.get("k3_nostore"): a(f"buffer_store_dwordx4 {vr(d, 4)}, v{LN16}, s[28:31], s49 offen offset:{(i8 % 4)*1024}")
    a.stamp_out("3", 6, 14)
    a.label("K3_END")
    a("s_endpgm")
    return a.text()

K4_LDS = 16*1024
def gen_k4():
    a = Asm()
    a("s_cmp_ge_u32 s2, 256")
    a("s_cbranch_scc1 K4_END")
    a(f"s_load_dwordx2 s[4:5], s[0:1], {KA_X}")
    a(f"s_load_dwordx2 s[6:7], s[0:1], {KA_WS}")
    a("v_and_b32 v1, 7, v0")
    a("v_lshrrev_b32 v2, 3, v0")
    a("s_lshl_b32 s14, s2, 3")
    a("v_add_u32 v3, s14, v1")
    a("s_lshr_b32 s15, s2, 2")
    a("s_mul_i32 s16, s15, 40960")
    a("v_and_b32 v4, 31, v3")
    a("v_lshlrev_b32 v4, 4, v4")
    a("v_lshl_add_u32 v4, v2, 10, v4")
    a("v_add_u32 v4, s16, v4")
    a("s_movk_i32 s17, 1280")
    a("v_mul_u32_u24 v5, s17, v3")
    a("v_lshl_add_u32 v5, v2, 5, v5")
    a("s_waitcnt lgkmcnt(0)")
    a.srd(20, 4, 5, SZ_X)
    a.srd(24, 6, 7, 8*PART_SPLIT, add=WS_PART)
    a.srd(28, 6, 7, SZ_X, add=WS_H)
    a.srd(32, 6, 7, SZ_X, add=WS_HN)
    for sp in range(8):
        a(f"s_mov_b32 s18, {sp*PART_SPLIT}")
        a.vmem(f"buffer_load_dwordx4 {vr(32 + 8*sp, 4)}, v4, s[24:27], s18 offen", f"P{sp}")
        a.vmem(f"buffer_load_dwordx4 {vr(36 + 8*sp, 4)}, v4, s[24:27], s18 offen offset:512", f"P{sp}")
    a.vmem("buffer_load_dwordx4 v[96:99], v5, s[20:23], 0 offen", "x")
    a.vmem("buffer_load_dwordx4 v[100:103], v5, s[20:23], 0 offen offset:16", "x")
    a("v_mul_u32_u24 v6, 80, v1")
    a("v_lshrrev_b32 v7, 4, v0")
    a("v_lshl_add_u32 v7, v7, 2, v6")
    src = [0, 1, 4, 5, 2, 3, 6, 7]
    V = lambda i: 16 + i
    for sp in range(8):
        a.wait_vm([f"P{sp}"])
        for j in range(8):
            r = 32 + 8*sp + src[j]
            if sp == 0:
                a(f"v_lshlrev_b32 v{V(2*j)}, 16, v{r}")
                a(f"v_and_b32 v{V(2*j+1)}, 0xffff0000, v{r}")
            else:
                a(f"v_lshlrev_b32 v8, 16, v{r}")
                a(f"v_and_b32 v9, 0xffff0000, v{r}")
                a(f"v_add_f32 v{V(2*j)}, v{V(2*j)}, v8")
                a(f"v_add_f32 v{V(2*j+1)}, v{V(2*j+1)}, v9")
    a.wait_vm(["x"])
    for j in range(8):
        a(f"v_cvt_pk_bf16_f32 v8, v{V(2*j)}, v{V(2*j+1)}")
        a(f"v_lshlrev_b32 v{V(2*j)}, 16, v8")
        a(f"v_and_b32 v{V(2*j+1)}, 0xffff0000, v8")
        a(f"v_lshlrev_b32 v8, 16, v{96+j}")
        a(f"v_and_b32 v9, 0xffff0000, v{96+j}")
        a(f"v_add_f32 v{V(2*j)}, v{V(2*j)}, v8")
        a(f"v_add_f32 v{V(2*j+1)}, v{V(2*j+1)}, v9")
        a(f"v_cvt_pk_bf16_f32 v{32+j}, v{V(2*j)}, v{V(2*j+1)}")
        a(f"v_lshlrev_b32 v{V(2*j)}, 16, v{32+j}")
        a(f"v_and_b32 v{V(2*j+1)}, 0xffff0000, v{32+j}")
    a("buffer_store_dwordx4 v[32:35], v5, s[28:31], 0 offen")
    a("buffer_store_dwordx4 v[36:39], v5, s[28:31], 0 offen offset:16")
    red = [0]
    def row_sum(v):
        base = 12288 + red[0]*1024; red[0] += 1
        a("s_nop 1")
        a(f"v_add_f32_dpp {v}, {v}, {v} row_ror:8 row_mask:0xf bank_mask:0xf")
        a(f"ds_write_b32 v7, {v} offset:{base}")
        a("s_waitcnt lgkmcnt(0)")
        a("s_barrier")
        for i in range(5): a(f"ds_read_b128 {vr(40 + 4*i, 4)}, v6 offset:{base + 16*i}")
        a("s_waitcnt lgkmcnt(0)")
        a(f"v_add_f32 {v}, v40, v41")
        for i in range(2, 20): a(f"v_add_f32 {v}, {v}, v{40+i}")
        a(f"v_mul_f32 {v}, {1.0/640}, {v}")
    for ln in range(2):
        a(f"v_add_f32 v10, v{V(0)}, v{V(1)}")
        for i in range(2, 16): a(f"v_add_f32 v10, v10, v{V(i)}")
        row_sum("v10")
        a(f"v_sub_f32 v8, v{V(0)}, v10")
        a("v_mul_f32 v11, v8, v8")
        for i in range(1, 16):
            a(f"v_sub_f32 v8, v{V(i)}, v10")
            a("v_fmac_f32 v11, v8, v8")
        row_sum("v11")
        bf16r(a, "v11", "v11")
        a("v_add_f32 v11, 0x3727c5ac, v11")
        bf16r(a, "v11", "v11")
        a("v_sqrt_f32 v11, v11")
        a("s_nop 0")
        bf16r(a, "v11", "v11")
        a("v_rcp_f32 v11, v11")
        bf16r(a, "v10", "v10")
        for j in range(8):
            x0, x1 = V(2*j), V(2*j+1)
            a(f"v_sub_f32 v{x0}, v{x0}, v10")
            a(f"v_sub_f32 v{x1}, v{x1}, v10")
            a(f"v_cvt_pk_bf16_f32 v8, v{x0}, v{x1}")
            a(f"v_lshlrev_b32 v{x0}, 16, v8")
            a(f"v_and_b32 v{x1}, 0xffff0000, v8")
            a(f"v_mul_f32 v{x0}, v{x0}, v11")
            a(f"v_mul_f32 v{x1}, v{x1}, v11")
            a(f"v_cvt_pk_bf16_f32 v{64+j}, v{x0}, v{x1}")
            if ln == 0:
                a(f"v_lshlrev_b32 v{x0}, 16, v{64+j}")
                a(f"v_and_b32 v{x1}, 0xffff0000, v{64+j}")
    a("s_movk_i32 s17, 272")
    a("v_mul_u32_u24 v8, s17, v2")
    a("v_lshl_add_u32 v8, v1, 1, v8")
    for j in range(8):
        a(f"ds_write_b16 v8, v{64+j} offset:{32*j}")
        a(f"ds_write_b16_d16_hi v8, v{64+j} offset:{32*j+16}")
    a("v_lshrrev_b32 v9, 4, v0")
    a("v_add_u32 v10, v9, v0")
    a("v_lshlrev_b32 v10, 4, v10")
    a("v_and_b32 v11, 15, v0")
    a("v_lshlrev_b32 v11, 4, v11")
    a("v_lshl_add_u32 v11, v9, 16, v11")
    a("s_lshl_b32 s18, s15, 10")
    a("s_and_b32 s19, s2, 3")
    a("s_lshl_b32 s19, s19, 8")
    a("s_add_u32 s18, s18, s19")
    a("s_waitcnt lgkmcnt(0)")
    a("s_barrier")
    a("ds_read_b128 v[40:43], v10")
    a(f"ds_read_b128 v[44:47], v10 offset:{340*16}")
    a(f"s_add_u32 s19, s18, {20*65536}")
    a("s_waitcnt lgkmcnt(1)")
    a("buffer_store_dwordx4 v[40:43], v11, s[32:35], s18 offen")
    a("s_waitcnt lgkmcnt(0)")
    a("buffer_store_dwordx4 v[44:47], v11, s[32:35], s19 offen")
    a.label("K4_END")
    a("s_endpgm")
    return a.text()
```

```python
from common import *
import math, struct
def hexf(x): return "0x%08x" % struct.unpack("<I", struct.pack("<f", x))[0]
K5_LDS = 160*1024
SZ_U = 40*54*1024

def gen_k56(which):
    k5 = which == 5
    P = "K5" if k5 else "K6"
    NWG = 216 if k5 else 256
    PER = 27 if k5 else 32
    NS = 8 if k5 else 7
    RS = 3456 if k5 else 4096
    XS = 64 if k5 else 54
    a = Asm()
    a(f"s_cmp_ge_u32 s2, {NWG}")
    a(f"s_cbranch_scc1 {P}_END")
    a.stamp(str(which))
    a(f"s_load_dwordx4 s[4:7], s[0:1], {KA_W1 if k5 else KA_W2}")
    a(f"s_load_dwordx2 s[8:9], s[0:1], {KA_WS}")
    if not k5: a(f"s_load_dwordx2 s[10:11], s[0:1], {KA_OUT}")
    XR = lambda n, db: (n % 6)*20 + db*4
    ACC = lambda db, cb: 120 + (db*4 + cb)*4
    FW = lambda buf, cb: 200 + buf*16 + cb*4
    VD = [232, 233, 234, 235]; RW = [236, 237, 238, 239]
    LN16, L, T0, T1, T2, TID = 240, 241, 242, 243, 244, 245
    BI = 246
    a(f"v_mov_b32 v{TID}, v0")
    a(f"v_and_b32 v{L}, 63, v0")
    a(f"v_lshrrev_b32 v{T0}, 6, v0")
    a("s_nop 0")
    a(f"v_readfirstlane_b32 s14, v{T0}")
    a("s_and_b32 s15, s2, 7")
    a(f"s_mul_i32 s15, s15, {PER}")
    a("s_lshr_b32 s16, s2, 3")
    a("s_add_u32 s16, s16, s15")
    a("s_lshr_b32 s15, s16, 3")
    a("s_and_b32 s16, s16, 7")
    a(f"v_lshlrev_b32 v{LN16}, 4, v{L}")
    a(f"v_lshrrev_b32 v{T0}, 3, v{L}")
    a(f"s_movk_i32 s17, {RS}")
    a(f"v_mul_u32_u24 v{T0}, s17, v{T0}")
    a("s_lshl_b32 s18, s15, 7")
    a(f"v_add_u32 v{T0}, s18, v{T0}")
    a(f"v_bfe_u32 v{T1}, v{L}, 4, {1 if k5 else 2}")
    a(f"v_lshlrev_b32 v{T1}, 1, v{T1}")
    a(f"v_and_b32 v{T2}, 7, v{L}")
    a(f"v_xor_b32 v{T1}, v{T1}, v{T2}")
    for p in range(4):
        if k5 and (p & 1):
            a(f"v_xor_b32 v{T2}, 4, v{T1}")
            a(f"v_lshl_add_u32 v{VD[p]}, v{T2}, 4, v{T0}")
        else:
            a(f"v_lshl_add_u32 v{VD[p]}, v{T1}, 4, v{T0}")
        if p: a(f"v_add_u32 v{VD[p]}, {8*p*RS - p*1024}, v{VD[p]}")
    a(f"s_mul_i32 s19, s14, {NS*32*RS}")
    a("s_mul_i32 s50, s14, 20480")
    a(f"s_mul_i32 s51, s16, {5*XS*1024}")
    a(f"s_mul_i32 s52, s14, {NS*1024}")
    a("s_add_u32 s51, s51, s52")
    for db in range(5):
        a(f"s_add_u32 s{40+db}, s51, {db*XS*1024}")
        a(f"s_add_u32 s{45+db}, s51, {db*XS*1024 + 4096}")
    a("s_waitcnt lgkmcnt(0)")
    a.srd(20, 4, 5, 2048*1728*2)
    if k5:
        a.srd(24, 8, 9, SZ_X, add=WS_HN)
        a.srd(28, 8, 9, SZ_U, add=WS_U)
        a.srd(32, 6, 7, 1728*2)
    else:
        a.srd(24, 8, 9, SZ_U, add=WS_U)
        a.srd(28, 10, 11, SZ_X)
        a.srd(32, 6, 7, 2048*2)
        a.srd(36, 8, 9, SZ_X, add=WS_H)
    def dma_W(n):
        def f():
            a(f"s_add_u32 m0, s50, {(n % 5)*4096}")
            a(f"s_add_u32 s53, s19, {n*32*RS}")
            for p in range(4):
                a.vmem(f"buffer_load_dwordx4 v{VD[p]}, s[20:23], s53 offen offset:{p*1024} lds", f"W{n}")
        return f
    def ld_x(n, db):
        def f():
            a.vmem(f"buffer_load_dwordx4 {vr(XR(n, db), 4)}, v{LN16}, s[24:27], s{40 + 5*(n // 4) + db} offen offset:{(n % 4)*1024}", f"X{n}")
        return f
    for n in range(6):
        if n < 5: dma_W(n)()
        for db in range(5): ld_x(n, db)()
    a.stamp(str(which))
    a(f"v_bfe_u32 v{T0}, v{L}, 2, 2")
    a(f"v_lshrrev_b32 v{T1}, 4, v{L}")
    a(f"v_lshl_add_u32 v{T2}, v{T1}, {3 if k5 else 2}, v{T0}")
    a(f"v_lshlrev_b32 v{T2}, 7, v{T2}")
    a(f"v_add_u32 v{T2}, s50, v{T2}")
    a(f"v_and_b32 v{RW[0]}, 3, v{L}")
    a(f"v_lshl_add_u32 v{T2}, v{RW[0]}, 3, v{T2}")
    a(f"v_lshrrev_b32 v{T0}, 1, v{T0}")
    a(f"v_and_b32 v{T1}, 1, v{T1}")
    a(f"v_lshl_add_u32 v{T0}, v{T1}, 1, v{T0}")
    for cb in range(4):
        a(f"v_xor_b32 v{T1}, {cb}, v{T0}")
        a(f"v_lshl_add_u32 v{RW[cb]}, v{T1}, 5, v{T2}")
    R2 = 512 if k5 else 2048
    extra = []
    if k5:
        a(f"v_lshrrev_b32 v{T0}, 4, v{L}")
        a(f"v_lshlrev_b32 v{T0}, 3, v{T0}")
        for cb in range(4):
            a.vmem(f"buffer_load_dwordx2 {vr(BI + 2*cb, 2)}, v{T0}, s[32:35], s18 offen offset:{32*cb}", "B")
    else:
        GO = [246, 247]; RA = [248, 249]; BO = [250, 251]
        a("s_movk_i32 s54, 6554")
        a("s_movk_i32 s55, 1280")
        a("s_mul_i32 s56, s15, 64*1280")
        a("s_mul_i32 s57, s16, 160")
        a("s_add_u32 s56, s56, s57")
        for q in range(2):
            a(f"v_add_u32 v{T0}, {512*q}, v{TID}")
            a(f"v_mul_u32_u24 v{T1}, s54, v{T0}")
            a(f"v_lshrrev_b32 v{T1}, 16, v{T1}")
            a(f"v_mul_u32_u24 v{T2}, 10, v{T1}")
            a(f"v_sub_u32 v{T0}, v{T0}, v{T2}")
            a(f"v_mul_u32_u24 v{T2}, s55, v{T1}")
            a(f"v_lshl_add_u32 v{GO[q]}, v{T0}, 4, v{T2}")
            a(f"v_lshlrev_b32 v{BO[q]}, 1, v{T1}")
            a(f"v_lshlrev_b32 v{T2}, 1, v{T0}")
            a(f"v_xor_b32 v{T2}, v{T2}, v{T1}")
            a(f"v_and_b32 v{T2}, 15, v{T2}")
            a(f"v_lshlrev_b32 v{T2}, 4, v{T2}")
            a(f"v_lshrrev_b32 v{T1}, 4, v{T1}")
            a(f"v_lshl_add_u32 v{T2}, v{T1}, 10, v{T2}")
            a(f"v_and_b32 v{T1}, 1, v{T0}")
            a(f"v_lshl_add_u32 v{T2}, v{T1}, 9, v{T2}")
            a(f"v_lshrrev_b32 v{T1}, 1, v{T0}")
            a(f"v_lshl_add_u32 v{RA[q]}, v{T1}, 12, v{T2}")
        HR = [20, 24]; BR = [28, 29]
        def ld_h():
            for q in range(2):
                if q == 1:
                    a("s_cmp_ge_u32 s14, 2")
                    a("s_cselect_b32 s58, 0x7fffffff, s56")
                    a("s_cselect_b32 s59, 0x7fffffff, s18")
                a.vmem(f"buffer_load_dwordx4 {vr(HR[q], 4)}, v{GO[q]}, s[36:39], s{56 if q == 0 else 58} offen", "H")
                a.vmem(f"buffer_load_ushort v{BR[q]}, v{BO[q]}, s[32:35], s{18 if q == 0 else 59} offen", "H")
        extra = [ld_h]
    def reads(n):
        return [f"ds_read_b64_tr_b16 {vr(FW(n % 2, cb) + 2*r2, 2)}, v{RW[cb]} offset:{(n % 5)*4096 + r2*R2}"
                for cb in range(4) for r2 in range(2)]
    def mf(n):
        m = []
        for cb in range(4):
            for db in range(5):
                c = vr(ACC(db, cb), 4)
                w, x = vr(FW(n % 2, cb), 4), vr(XR(n, db), 4)
                ab = f"{w}, {x}" if k5 else f"{x}, {w}"
                m.append(f"v_mfma_f32_16x16x32_bf16 {c}, {ab}, {'0' if n == 0 else c}")
        return m
    for n in range(NS + 1):
        tags = ([f"X{n-1}"] if n else []) + ([f"W{n}"] if n < NS else [])
        a.wait_vm(tags, "lgkmcnt(0)")
        a.stamp(str(which))
        fill = []
        if n < NS: fill += reads(n)
        if n >= 1 and n - 1 + 5 < NS: fill.append(dma_W(n + 4))
        if n >= 2 and n - 2 + 6 < NS: fill += [ld_x(n + 4, db) for db in range(5)]
        if n == 3: fill += extra
        if n == 0:
            for f in fill: f() if callable(f) else a(f)
        else: interleave(a, mf(n - 1)[:1 if OPT.get("k5_nomfma") else 20], fill, per_gap=1)
    if k5:
        a(f"v_add_u32 v{T0}, s50, v{LN16}")
        WR = lambda db: T0
    else:
        a(f"v_lshrrev_b32 v{T1}, 4, v{L}")
        a(f"v_lshlrev_b32 v{T1}, 4, v{T1}")
        a(f"v_xor_b32 v{T1}, v{T1}, v{LN16}")
        a(f"v_add_u32 v{T1}, s50, v{T1}")
        for db in range(4): a(f"v_xor_b32 v{FW(NS % 2, db)}, {64*db}, v{T1}")
        WR = lambda db: FW(NS % 2, db & 3)
    a("s_nop 7")
    for cb in range(4):
        for db in range(5):
            a(f"ds_write_b128 v{WR(db)}, {vr(ACC(db, cb), 4)} offset:{(db*4 + cb)*1024}")
    if k5:
        a("s_lshl_b32 s54, s14, 12")
        a(f"v_add_u32 v{T0}, s54, v{LN16}")
        a(f"v_add_u32 v{T1}, 81920, v{T0}")
        a("s_waitcnt vmcnt(0) lgkmcnt(0)")
        a("s_barrier")
        a.stamp(str(which))
        a("s_cmp_ge_u32 s14, 5")
        a(f"s_cbranch_scc1 {P}_END")
        c1 = -2*math.log2(math.e)*0.7978845608028654
        a(f"s_mov_b32 s56, {hexf(c1)}")
        a(f"v_mov_b32 v{T2}, {hexf(c1*0.044715)}")
        a("s_mul_i32 s57, s16, 5")
        a("s_add_u32 s57, s57, s14")
        a("s_mul_i32 s57, s57, 54*1024")
        a("s_lshl_b32 s58, s15, 11")
        a("s_add_u32 s57, s57, s58")
        def rd(cb, ww): return f"ds_read_b128 {vr(cb*32 + ww*4, 4)}, v{T0 if ww < 4 else T1} offset:{(ww % 4)*20480 + cb*1024}"
        for ww in range(8): a(rd(0, ww))
        for cb in range(4):
            if cb < 3:
                for ww in range(7): a(rd(cb + 1, ww))
                a("s_waitcnt lgkmcnt(7)")
                a(rd(cb + 1, 7))
            else: a("s_waitcnt lgkmcnt(0)")
            b = cb*32
            for st in (16, 8, 4):
                for i in range(st): a(f"v_add_f32 v{b+i}, v{b+i}, v{b+st+i}")
            for j in range(2):
                x0, x1, t0, t1 = b + 2*j, b + 2*j + 1, b + 8 + 2*j, b + 9 + 2*j
                a(f"v_cvt_pk_bf16_f32 v{t0}, v{x0}, v{x1}")
                a(f"v_lshlrev_b32 v{x0}, 16, v{t0}")
                a(f"v_and_b32 v{x1}, 0xffff0000, v{t0}")
                a(f"v_lshlrev_b32 v{t0}, 16, v{BI + 2*cb + j}")
                a(f"v_and_b32 v{t1}, 0xffff0000, v{BI + 2*cb + j}")
                a(f"v_add_f32 v{x0}, v{x0}, v{t0}")
                a(f"v_add_f32 v{x1}, v{x1}, v{t1}")
                a(f"v_cvt_pk_bf16_f32 v{t0}, v{x0}, v{x1}")
                a(f"v_lshlrev_b32 v{x0}, 16, v{t0}")
                a(f"v_and_b32 v{x1}, 0xffff0000, v{t0}")
                for x, t in ((x0, t0), (x1, t1)):
                    a(f"v_mul_f32 v{t}, v{x}, v{x}")
                    a(f"v_fma_f32 v{t}, v{t}, v{T2}, s56")
                    a(f"v_mul_f32 v{t}, v{t}, v{x}")
                    a(f"v_exp_f32 v{t}, v{t}")
                for x, t in ((x0, t0), (x1, t1)): a(f"v_add_f32 v{t}, 1.0, v{t}")
                for x, t in ((x0, t0), (x1, t1)): a(f"v_rcp_f32 v{t}, v{t}")
                a("s_nop 0")
                for x, t in ((x0, t0), (x1, t1)): a(f"v_mul_f32 v{x}, v{x}, v{t}")
                a(f"v_cvt_pk_bf16_f32 v{128 + 2*cb + j}, v{x0}, v{x1}")
            if cb & 1:
                a(f"buffer_store_dwordx4 {vr(128 + 4*(cb >> 1), 4)}, v{LN16}, s[28:31], s57 offen offset:{(cb >> 1)*1024}")
    else:
        for q in range(2):
            a(f"v_xor_b32 v{VD[q]}, 16, v{RA[q]}")
            a(f"v_add_u32 v{VD[2+q]}, 81920, v{RA[q]}")
            a(f"v_add_u32 v{RW[q]}, 81920, v{VD[q]}")
        a("s_waitcnt vmcnt(0) lgkmcnt(0)")
        a("s_barrier")
        for q in range(2):
            if q == 1:
                a("s_cmp_ge_u32 s14, 2")
                a(f"s_cbranch_scc1 {P}_END")
            b = 32 + q*64
            def rd(hf, ww):
                base = (RA[q] if hf == 0 else VD[q]) if ww < 4 else (VD[2+q] if hf == 0 else RW[q])
                return f"ds_read_b128 {vr(b + hf*32 + ww*4, 4)}, v{base} offset:{(ww % 4)*20480 + hf*256}"
            for ww in range(8): a(rd(0, ww))
            for ww in range(7): a(rd(1, ww))
            a(f"v_lshlrev_b32 v{BR[q]}, 16, v{BR[q]}")
            for hf in range(2):
                if hf == 0:
                    a("s_waitcnt lgkmcnt(7)")
                    a(rd(1, 7))
                else: a("s_waitcnt lgkmcnt(0)")
                bb = b + hf*32
                for st in (16, 8, 4):
                    for i in range(st): a(f"v_add_f32 v{bb+i}, v{bb+i}, v{bb+st+i}")
                for j in range(2):
                    x0, x1, t0, t1 = bb + 2*j, bb + 2*j + 1, bb + 8 + 2*j, bb + 9 + 2*j
                    hreg = HR[q] + 2*hf + j
                    a(f"v_cvt_pk_bf16_f32 v{t0}, v{x0}, v{x1}")
                    a(f"v_lshlrev_b32 v{x0}, 16, v{t0}")
                    a(f"v_and_b32 v{x1}, 0xffff0000, v{t0}")
                    a(f"v_add_f32 v{x0}, v{x0}, v{BR[q]}")
                    a(f"v_add_f32 v{x1}, v{x1}, v{BR[q]}")
                    a(f"v_cvt_pk_bf16_f32 v{t0}, v{x0}, v{x1}")
                    a(f"v_lshlrev_b32 v{x0}, 16, v{t0}")
                    a(f"v_and_b32 v{x1}, 0xffff0000, v{t0}")
                    a(f"v_lshlrev_b32 v{t0}, 16, v{hreg}")
                    a(f"v_and_b32 v{t1}, 0xffff0000, v{hreg}")
                    a(f"v_add_f32 v{x0}, v{x0}, v{t0}")
                    a(f"v_add_f32 v{x1}, v{x1}, v{t1}")
                    a(f"v_cvt_pk_bf16_f32 v{hreg}, v{x0}, v{x1}")
            a(f"buffer_store_dwordx4 {vr(HR[q], 4)}, v{GO[q]}, s[28:31], s56 offen")
    a.stamp_out(str(which), 8, 14)
    a.label(f"{P}_END")
    a("s_endpgm")
    return a.text()
```

```python
import sys, os
sys.path.insert(0, os.path.dirname(os.path.abspath(__file__)))
from common import *
from k1 import gen_k1, K1_LDS
from k2 import gen_k2, K2_LDS
from k3 import gen_k3, gen_k4, K3_LDS, K4_LDS
from k5 import gen_k56, K5_LDS
def build(path, opts=None):
    OPT.clear(); OPT.update(opts or {})
    ref = open(f"cdna_kernels/{NAME}.s.ref").read().split("\n")
    hdr = [l for l in ref if l.startswith(";") and not l.startswith("; @launch")]
    ks = [("k1_kernel", gen_k1(), 256, 512, K1_LDS, 256),
          ("k2_kernel", gen_k2(), 256, 512, K2_LDS, 256),
          ("k3_kernel", gen_k3(), 256, 512, K3_LDS, 256),
          ("k4_kernel", gen_k4(), 256, 320, K4_LDS, 104),
          ("k5_kernel", gen_k56(5), 216, 512, K5_LDS, 256),
          ("k6_kernel", gen_k56(6), 256, 512, K5_LDS, 256)]
    out = "\n".join(hdr) + "\n"
    for n, _, g, b, lds, _ in ks:
        out += f"; @launch kernel={n} grid=({g},1,1) block=({b},1,1) lds={lds}\n"
    out += '.amdgcn_target "amdgcn-amd-amdhsa--gfx950"\n.text\n'
    for n, t, *_ in ks:
        out += kernel_header(n) + t
    out += '.section .rodata,"a"\n'
    for n, _, _, _, _, v in ks:
        out += kernel_desc(n, v)
    open(path, "w").write(out)
    print(path, len(out))
if __name__ == "__main__":
    build(sys.argv[1] if len(sys.argv) > 1 else f"cdna_kernels/{NAME}.s", dict((x.split("=") + [1])[:2] for x in sys.argv[2:]))
```

```python
NAME = "sequential_preLN__compressed_kv_cla__mixer_token_mlp__prompt"
KA_X, KA_CKV, KA_WQ, KA_WUK, KA_WUV, KA_WO, KA_BX, KA_W1, KA_B1, KA_W2, KA_B2, KA_OUT, KA_DBG, KA_WS = [8*i for i in range(14)]
MB = 1 << 20
OPT = {}
WS_XN   = 0
WS_KT   = 4*MB
WS_VT   = 20*MB
WS_CTX  = 36*MB
WS_PART = 52*MB
WS_H    = 96*MB
WS_HN   = 100*MB
WS_U    = 104*MB
SZ_X = 2048*640*2
WS_FLAG = 110*MB
FL_U, FL_HN, FL_PART, FL_CTX = 0, 1024, 2048, 3072
FLAG_SZ = 4096

class Asm:
    def __init__(self):
        self.lines = []
        self.vm = []
    def __call__(self, s):
        self.lines.append("    " + s)
    def label(self, l):
        self.lines.append(l + ":")
    def comment(self, s):
        self.lines.append("    ; " + s)
    def vmem(self, s, tag):
        self(s); self.vm.append(tag)
    def vm_count_for(self, tags):
        last = -1
        for i, t in enumerate(self.vm):
            if t in tags: last = i
        n = len(self.vm) - 1 - last
        self.vm = self.vm[last+1:]
        return n if last >= 0 else None
    def wait_vm(self, tags, extra=""):
        n = self.vm_count_for(tags)
        if n is None:
            if extra: self("s_waitcnt " + extra)
            return
        assert n <= 63
        self(("s_waitcnt vmcnt(%d) " % n + extra).strip())
    def srd(self, d, lo, hi, size, add=0):
        if add:
            self(f"s_add_u32 s{d}, s{lo}, {add}")
            self(f"s_addc_u32 s{d+1}, s{hi}, 0")
            self(f"s_and_b32 s{d+1}, s{d+1}, 0xffff")
        else:
            self(f"s_mov_b32 s{d}, s{lo}")
            self(f"s_and_b32 s{d+1}, s{hi}, 0xffff")
        self(f"s_mov_b32 s{d+2}, {size}")
        self(f"s_mov_b32 s{d+3}, 0x00020000")
    def stamp(self, k):
        if k in str(OPT.get("stamp", "")):
            i = getattr(self, "nst", 0); self.nst = i + 1
            self(f"{OPT.get('rt', 's_memtime')} s[{70+2*i}:{71+2*i}]")
    def stamp_out(self, k, wslo, wave):
        if k in str(OPT.get("stamp", "")):
            self("s_waitcnt vmcnt(0) lgkmcnt(0)")
            self.stamp(k)
            self("s_waitcnt lgkmcnt(0)")
            self.srd(64, wslo, wslo+1, 1*MB, add=120*MB + 131072*str(OPT['stamp']).index(k))
            self(f"s_lshl_b32 s68, s2, 3"); self(f"s_add_u32 s68, s68, s{wave}"); self("s_lshl_b32 s68, s68, 6")
            self("v_mov_b32 v0, 0")
            for i in range(self.nst):
                self(f"v_mov_b32 v1, s{70+2*i}")
                self(f"buffer_store_dword v1, v0, s[64:67], s68 offen offset:{4*i}")
    def text(self):
        return "\n".join(self.lines) + "\n"

def kernel_header(name):
    return f".globl {name}\n.p2align 8\n.type {name},@function\n{name}:\n"

def kernel_desc(name, vgpr, sgpr=102, accum=None):
    if accum is None: accum = (vgpr + 3)//4*4
    return f""".p2align 6
.amdhsa_kernel {name}
  .amdhsa_next_free_vgpr {vgpr}
  .amdhsa_next_free_sgpr {sgpr}
  .amdhsa_accum_offset {accum}
  .amdhsa_group_segment_fixed_size 0
  .amdhsa_kernarg_size 112
  .amdhsa_user_sgpr_count 2
  .amdhsa_user_sgpr_kernarg_segment_ptr 1
  .amdhsa_system_sgpr_workgroup_id_x 1
  .amdhsa_float_denorm_mode_32 3
.end_amdhsa_kernel
"""

def vr(b, n): return f"v[{b}:{b+n-1}]"

def interleave(a, mfmas, fillers, first_gap=0, per_gap=None):
    nf = len(fillers); nm = len(mfmas)
    if per_gap is None:
        per_gap = -(-nf // max(1, nm - first_gap))
    fi = 0
    for i, m in enumerate(mfmas):
        a(m)
        if i >= first_gap:
            for _ in range(per_gap):
                if fi < nf:
                    f = fillers[fi]; fi += 1
                    f() if callable(f) else a(f)
    while fi < nf:
        f = fillers[fi]; fi += 1
        f() if callable(f) else a(f)

def wave_sum(a, v, tmp, s0):
    a("s_nop 1")
    a(f"v_add_f32_dpp {v}, {v}, {v} quad_perm:[1,0,3,2] row_mask:0xf bank_mask:0xf")
    a("s_nop 1")
    a(f"v_add_f32_dpp {v}, {v}, {v} quad_perm:[2,3,0,1] row_mask:0xf bank_mask:0xf")
    a("s_nop 1")
    a(f"v_add_f32_dpp {v}, {v}, {v} row_half_mirror row_mask:0xf bank_mask:0xf")
    a("s_nop 1")
    a(f"v_add_f32_dpp {v}, {v}, {v} row_mirror row_mask:0xf bank_mask:0xf")
    a("s_nop 1")
    for i in range(4):
        a(f"v_readlane_b32 s{s0+i}, {v}, {16*i}")
    a("s_nop 1")
    a(f"v_mov_b32 {v}, s{s0}")
    for i in range(1, 4):
        a(f"v_add_f32 {v}, s{s0+i}, {v}")

def bf16r(a, dst, src, tmp=None):
    a(f"v_cvt_pk_bf16_f32 {dst}, {src}, {src}")
    a(f"v_and_b32 {dst}, 0xffff0000, {dst}")

_wf = [0]
def wait_flags(a, srd, wave, lane, vt, vf, scnt, soff, n, w4=False):
    _wf[0] += 1; i = _wf[0]
    a(f"s_cmp_lg_u32 s{wave}, 0")
    a(f"s_cbranch_scc1 WF_SKIP{i}")
    a(f"v_lshlrev_b32 v{vt}, {4 if w4 else 2}, v{lane}")
    if n < 64: a(f"s_mov_b64 exec, {(1 << n) - 1}")
    a(f"s_mov_b32 s{scnt}, 0x40000")
    a.label(f"WF_LOOP{i}")
    if w4: a(f"buffer_load_dwordx4 v[{vf}:{vf+3}], v{vt}, s[{srd}:{srd+3}], {soff} offen sc1")
    else: a(f"buffer_load_dword v{vf}, v{vt}, s[{srd}:{srd+3}], {soff} offen sc1")
    a("s_waitcnt vmcnt(0)")
    if w4:
        a(f"v_min_u32 v{vf}, v{vf}, v{vf+1}")
        a(f"v_min3_u32 v{vf}, v{vf}, v{vf+2}, v{vf+3}")
    a(f"v_cmp_eq_u32 vcc, 0, v{vf}")
    a("s_cmp_eq_u64 vcc, 0")
    a(f"s_cbranch_scc1 WF_DONE{i}")
    a(f"s_sleep {OPT.get('slp', 4)}")
    a(f"s_sub_u32 s{scnt}, s{scnt}, 1")
    a(f"s_cbranch_scc0 WF_LOOP{i}")
    a.label(f"WF_DONE{i}")
    if n < 64: a("s_mov_b64 exec, -1")
    a.label(f"WF_SKIP{i}")
    a("s_barrier")

def signal(a, srd, wave, v0, v1, soff):
    _wf[0] += 1; i = _wf[0]
    a(f"v_mov_b32 v{v0}, 1")
    a(f"v_mov_b32 v{v1}, 0")
    a("s_waitcnt vmcnt(0)")
    a("s_barrier")
    a(f"s_cmp_lg_u32 s{wave}, 0")
    a(f"s_cbranch_scc1 SG_SKIP{i}")
    a("s_mov_b64 exec, 1")
    a(f"buffer_store_dword v{v0}, v{v1}, s[{srd}:{srd+3}], {soff} offen sc1")
    a("s_mov_b64 exec, -1")
    a.label(f"SG_SKIP{i}")
```

```python
from common import *
from k2 import hexf, CSCALE
K1_LDS = 160*1024
A_SLOT = [0, 32768, 65536]
W_SLOT = [98304 + 16384*i for i in range(4)]

def gen_k1():
    a = Asm()
    a("s_cmp_ge_u32 s2, 256")
    a("s_cbranch_scc1 K1_END")
    a.stamp("1")
    a(f"s_load_dwordx4 s[4:7], s[0:1], {KA_X}")
    a(f"s_load_dwordx4 s[8:11], s[0:1], {KA_WUK}")
    a(f"s_load_dwordx2 s[12:13], s[0:1], {KA_WS}")
    a(f"s_load_dwordx2 s[60:61], s[0:1], {KA_WQ}")
    a("v_and_b32 v1, 63, v0")
    a("v_lshrrev_b32 v2, 6, v0")
    a("s_nop 0")
    a("v_readfirstlane_b32 s14, v2")
    a("s_and_b32 s15, s2, 7")
    a("s_lshr_b32 s16, s2, 3")
    a("s_and_b32 s17, s16, 7")
    a("s_lshr_b32 s18, s16, 3")
    a("s_lshl_b32 s19, s15, 2")
    a("s_add_u32 s18, s18, s19")
    a("s_and_b32 s19, s18, 15")
    a("s_waitcnt lgkmcnt(0)")
    a.srd(20, 4, 5, SZ_X)
    a.srd(24, 6, 7, 2048*512*2)
    a("s_cmp_lt_u32 s18, 16")
    a("s_cselect_b32 s8, s8, s10")
    a("s_cselect_b32 s9, s9, s11")
    a(f"s_cselect_b32 s3, 0, {WS_VT - WS_KT}")
    a(f"s_or_b32 s3, s3, {WS_KT}")
    a.srd(28, 8, 9, 512*4096*2)
    a.srd(60, 60, 61, 640*4096*2)
    a("s_lshl_b32 s64, s2, 3")
    a("s_add_u32 s64, s64, s14")
    a("s_mul_i32 s64, s64, 3072")
    a.srd(32, 12, 13, SZ_X, add=WS_XN)
    a("s_add_u32 s36, s12, s3")
    a("s_addc_u32 s37, s13, 0")
    a("s_and_b32 s37, s37, 0xffff")
    a(f"s_mov_b32 s38, {16*MB}")
    a("s_mov_b32 s39, 0x00020000")
    if OPT.get("fuse"):
        a.srd(96, 12, 13, FLAG_SZ, add=WS_FLAG)
        a("s_lshl_b32 s40, s2, 3")
        a("s_add_u32 s40, s40, s14")
        a(f"s_cmp_ge_u32 s40, {FLAG_SZ//1024}")
        a("s_cbranch_scc1 K1_NOZ")
        a("v_lshlrev_b32 v3, 4, v0")
        for i in range(4): a(f"v_mov_b32 v{4+i}, 0")
        a("buffer_store_dwordx4 v[4:7], v3, s[96:99], 0 offen")
        a.label("K1_NOZ")
    a("s_lshl_b32 s40, s2, 3")
    a("s_add_u32 s40, s40, s14")
    a("s_mul_i32 s41, s40, 1280")
    a("v_lshlrev_b32 v3, 5, v1")
    a("v_add_u32 v3, s41, v3")
    a("v_cmp_gt_u32 vcc, 40, v1")
    a("v_mov_b32 v4, 0x80000000")
    a("s_nop 0")
    a("v_cndmask_b32 v3, v4, v3, vcc")
    a.vmem("buffer_load_dwordx4 v[8:11], v3, s[20:23], 0 offen", "x")
    a.vmem("buffer_load_dwordx4 v[12:15], v3, s[20:23], 0 offen offset:16", "x")
    VA = [200, 201, 202, 203]; VW = [204, 205]
    a("v_lshrrev_b32 v5, 3, v1")
    a("s_lshl_b32 s42, s17, 8")
    a("s_lshl_b32 s43, s14, 5")
    a("s_add_u32 s42, s42, s43")
    a("v_add_u32 v5, s42, v5")
    a("v_lshlrev_b32 v5, 10, v5")
    a("v_lshrrev_b32 v6, 4, v1")
    a("v_and_b32 v7, 7, v1")
    for p in range(4):
        a(f"v_xor_b32 v16, {(4*p)&7}, v6")
        a("v_xor_b32 v16, v16, v7")
        a("v_lshl_add_u32 v16, v16, 4, v5")
        a(f"v_add_u32 v{VA[p]}, {p*8*1024 - p*1024}, v16")
    a("v_lshrrev_b32 v5, 5, v1")
    a("v_and_b32 v6, 31, v1")
    a("s_lshl_b32 s43, s14, 2")
    a("s_lshl_b32 s44, s19, 9")
    for p in range(2):
        a(f"v_add_u32 v7, {2*p}, v5")
        a("v_lshlrev_b32 v16, 2, v7")
        a("v_xor_b32 v16, v16, v6")
        a("v_add_u32 v7, s43, v7")
        a("v_lshlrev_b32 v7, 13, v7")
        a("v_lshl_add_u32 v16, v16, 4, v7")
        a("v_add_u32 v16, s44, v16")
        a(f"v_add_u32 v{VW[p]}, {-p*1024 & 0xffffffff}, v16")
    a("s_lshl_b32 s45, s14, 12")
    a("s_lshl_b32 s46, s14, 11")
    def dma_A(t):
        def f():
            a(f"s_add_u32 m0, s45, {A_SLOT[t%3]}")
            a(f"s_mov_b32 s47, {t*128}")
            for p in range(4):
                a.vmem(f"buffer_load_dwordx4 v{VA[p]}, s[24:27], s47 offen offset:{p*1024} lds", f"A{t}")
        return f
    def dma_W(j):
        def f():
            a(f"s_add_u32 m0, s46, {W_SLOT[j%4]}")
            a(f"s_mov_b32 s48, {j*32*8192}")
            for p in range(2):
                a.vmem(f"buffer_load_dwordx4 v{VW[p]}, s[28:31], s48 offen offset:{p*1024} lds", f"W{j}")
        return f
    dma_A(0)(); dma_W(0)(); dma_W(1)()
    late = {0: [dma_A(1)], 1: [dma_W(2), dma_W(3)], 3: [dma_A(2)]}
    RA = [206, 207, 208, 209]; RW = [210, 211]
    a("v_and_b32 v5, 31, v1")
    a("v_lshrrev_b32 v6, 5, v1")
    a("v_bfe_u32 v7, v1, 1, 3")
    a("v_xor_b32 v7, v7, v6")
    a("s_lshr_b32 s49, s14, 2")
    a("s_and_b32 s50, s14, 3")
    a("s_lshl_b32 s51, s49, 14")
    a("v_lshlrev_b32 v5, 7, v5")
    a("v_add_u32 v5, s51, v5")
    for ks in range(4):
        a(f"v_xor_b32 v16, {2*ks}, v7")
        a(f"v_lshl_add_u32 v{RA[ks]}, v16, 4, v5")
    a("v_bfe_u32 v5, v1, 2, 2")
    a("v_lshrrev_b32 v6, 5, v1")
    a("v_lshl_add_u32 v6, v6, 3, v5")
    a("v_lshlrev_b32 v6, 9, v6")
    a("v_bfe_u32 v7, v1, 4, 1")
    a("v_lshl_add_u32 v6, v7, 5, v6")
    a("v_and_b32 v7, 3, v1")
    a("v_lshl_add_u32 v6, v7, 3, v6")
    a("s_lshr_b32 s51, s50, 1")
    a("s_lshl_b32 s51, s51, 8")
    a(f"s_add_u32 s51, s51, {W_SLOT[0]}")
    a("v_add_u32 v6, s51, v6")
    a("s_and_b32 s51, s50, 1")
    a("s_lshl_b32 s51, s51, 1")
    for nb in range(2):
        a(f"s_add_u32 s52, s51, {nb}")
        a("v_xor_b32 v7, s52, v5")
        a(f"v_lshl_add_u32 v{RW[nb]}, v7, 6, v6")
    def ln(a):
        pass
        for i in range(8):
            a(f"v_lshlrev_b32 v{220+2*i}, 16, v{8+i}")
            a(f"v_and_b32 v{221+2*i}, 0xffff0000, v{8+i}")
        a("v_add_f32 v236, v220, v221")
        for i in range(2, 16): a(f"v_add_f32 v236, v236, v{220+i}")
        wave_sum(a, "v236", "v237", 56)
        a(f"v_mul_f32 v236, {1.0/640}, v236")
        a("v_sub_f32 v237, v220, v236")
        a("v_mul_f32 v238, v237, v237")
        for i in range(1, 16):
            a(f"v_sub_f32 v237, v{220+i}, v236")
            a("v_fmac_f32 v238, v237, v237")
        a("v_cndmask_b32 v238, 0, v238, vcc")
        wave_sum(a, "v238", "v237", 56)
        a(f"v_mul_f32 v238, {1.0/640}, v238")
        bf16r(a, "v238", "v238")
        a("v_add_f32 v238, 0x3727c5ac, v238")
        bf16r(a, "v238", "v238")
        a("v_sqrt_f32 v238, v238")
        a("s_nop 0")
        bf16r(a, "v238", "v238")
        a("v_rcp_f32 v238, v238")
        bf16r(a, "v236", "v236")
        for i in range(0, 16, 2):
            a(f"v_sub_f32 v{220+i}, v{220+i}, v236")
            a(f"v_sub_f32 v{221+i}, v{221+i}, v236")
            a(f"v_cvt_pk_bf16_f32 v237, v{220+i}, v{221+i}")
            a(f"v_lshlrev_b32 v{220+i}, 16, v237")
            a(f"v_and_b32 v{221+i}, 0xffff0000, v237")
            a(f"v_mul_f32 v{220+i}, v{220+i}, v238")
            a(f"v_mul_f32 v{221+i}, v{221+i}, v238")
            a(f"v_cvt_pk_bf16_f32 v{8+i//2}, v{220+i}, v{221+i}")
        a("s_lshr_b32 s41, s40, 5")
        a("s_mul_i32 s41, s41, 40960")
        a("s_and_b32 s42, s40, 31")
        a("s_lshl_b32 s42, s42, 4")
        a("s_add_u32 s41, s41, s42")
        a("v_lshlrev_b32 v3, 10, v1")
        a("v_add_u32 v3, s41, v3")
        a("v_cndmask_b32 v3, v4, v3, vcc")
        a("buffer_store_dwordx4 v[8:11], v3, s[32:35], 0 offen")
        a("buffer_store_dwordx4 v[12:15], v3, s[32:35], 0 offen offset:512")
    la = Asm(); ln(la)
    lnops = [l.strip() for l in la.lines]
    a.stamp("1"); nst0 = getattr(a, "nst", 0)
    a("v_lshlrev_b32 v212, 4, v1")
    a("s_cmp_lt_u32 s18, 16")
    a("s_cbranch_scc0 K1_V")
    vm_save = list(a.vm)
    for typ in range(2):
        a.vm = list(vm_save); a.nst = nst0
        if typ == 1: a.label("K1_V")
        ACC = lambda mb, nb: 64 + (mb*2+nb)*16
        FA = lambda buf, mb: 16 + buf*24 + mb*4
        FW = lambda buf, nb: 16 + buf*24 + 16 + nb*4
        RA2 = [213, 214, 215, 216]
        for ks in range(4):
            a(f"v_add_u32 v{RA2[ks]}, 0x10000, v{RA[ks]}")
        NS = 32
        SK = int(OPT.get("k1_skew", 8))
        steps = [(n, (0, 1, 2, 3)) for n in range(NS - SK)] + [(n, (0, 1)) for n in range(NS - SK, NS)] + [(n, (2, 3)) for n in range(NS - SK, NS)]
        def reads(i):
            n, mbs = steps[i]
            t, ks = n // 4, n % 4
            j, k2 = n // 2, n % 2
            buf = i % 2
            r = []
            for nb in range(2):
                for r2 in range(2):
                    off = W_SLOT[j % 4] - W_SLOT[0] + (16*k2 + 4*r2)*512
                    r.append(f"ds_read_b64_tr_b16 {vr(FW(buf, nb)+2*r2, 2)}, v{RW[nb]} offset:{off}")
            for mb in mbs:
                if t % 3 == 2: r.append(f"ds_read_b128 {vr(FA(buf, mb), 4)}, v{RA2[ks]} offset:{mb*4096}")
                else: r.append(f"ds_read_b128 {vr(FA(buf, mb), 4)}, v{RA[ks]} offset:{A_SLOT[t % 3] + mb*4096}")
            return r
        def mfmas(i):
            n, mbs = steps[i]
            buf = i % 2
            m = []
            for mb in mbs:
                for nb in range(2):
                    c = vr(ACC(mb, nb), 16)
                    cin = "0" if n == 0 else c
                    fa, fw = vr(FA(buf, mb), 4), vr(FW(buf, nb), 4)
                    if typ == 0: m.append(f"v_mfma_f32_32x32x16_bf16 {c}, {fw}, {fa}, {cin}")
                    else:        m.append(f"v_mfma_f32_32x32x16_bf16 {c}, {fa}, {fw}, {cin}")
            return m
        a("s_lshl_b32 s53, s19, 1")
        a("s_lshr_b32 s54, s50, 1")
        a("s_add_u32 s53, s53, s54")
        a("s_lshl_b32 s53, s53, 19")
        a("s_lshl_b32 s54, s17, 16")
        a("s_add_u32 s53, s53, s54")
        a("s_lshl_b32 s54, s49, 15")
        a("s_add_u32 s53, s53, s54")
        a("s_and_b32 s54, s50, 1")
        a(f"s_lshl_b32 s54, s54, {12 if typ == 0 else 11}")
        a("s_add_u32 s53, s53, s54")
        a(f"s_mov_b32 s65, {hexf(CSCALE)}")
        def unit(mb, nb, t, d):
            src = ACC(mb, nb) + 8*t
            o = []
            for i in range(4):
                if typ == 0:
                    o.append(f"v_mul_f32 v{src+2*i}, s65, v{src+2*i}")
                    o.append(f"v_mul_f32 v{src+2*i+1}, s65, v{src+2*i+1}")
                o.append(f"v_cvt_pk_bf16_f32 v{d+i}, v{src+2*i}, v{src+2*i+1}")
            if typ == 0: off = (mb >> 1)*16384 + (mb & 1)*8192 + (2*nb + t)*1024
            else:        off = (mb >> 1)*16384 + (2*(mb & 1) + t)*4096 + nb*1024
            o.append(f"s_add_u32 s55, s53, {off}")
            if not OPT.get("k1_nostore"): o.append(f"buffer_store_dwordx4 {vr(d, 4)}, v212, s[36:39], s55 offen {OPT.get('k1_st', 'sc1').replace('_', ' ')}")
            return o
        units = [(mb, nb, t) for mb in range(4) for nb in range(2) for t in range(2)]
        early = units[:8] if SK else []
        UPS = -(-8 // max(1, SK)) * int(OPT.get("k1_ups", 1))
        ne = 0
        lno = list(lnops)
        NT = len(steps)
        for i in range(NT + 1):
            fill = []
            n = steps[i][0] if i < NS else None
            if i < NS and n % 2 == 0:
                j = n // 2; t = j // 2
                a.wait_vm([f"A{t}", f"W{j}"], "lgkmcnt(0)")
                a("s_barrier")
                if n % 4 == 0: a.stamp("1")
                fill += reads(i)
                if j >= 1 and j + 3 < 16: fill.append(dma_W(j + 3))
                if j % 2 == 0 and t >= 1 and t + 2 < 8: fill.append(dma_A(t + 2))
            else:
                a("s_waitcnt lgkmcnt(0)")
                if i < NT: fill += reads(i)
            fill += late.get(i, [])
            if i in (25, 26, 27) and not OPT.get("nopf"):
                fill.append((lambda q: lambda: a.vmem(f"buffer_load_dwordx4 {vr(240 + 4*q, 4)}, v212, s[60:63], s64 offen offset:{q*1024}", "pf"))(i - 25))
            if i >= 6:
                cnt = 8 if SK else 7
                for x in lno[:cnt]:
                    if x.startswith("buffer_store"): fill.append((lambda x: lambda: a.vmem(x, "xs"))(x))
                    else: fill.append(x)
                lno = lno[cnt:]
            pg = 2
            if i > NS:
                for _ in range(UPS):
                    if early:
                        fill += unit(*early.pop(0), (192, 196, 252)[ne % 3]); ne += 1
                pg = -(-len(fill) // 4)
            if i == 0:
                for f in fill: f() if callable(f) else a(f)
            else:
                interleave(a, mfmas(i - 1)[:1 if OPT.get("k1_nomfma") else 8], fill, per_gap=pg)
        assert not lno and not early
        a.stamp("1")
        a("s_nop 7"); a("s_nop 7")
        for k, u in enumerate(units[8:] if SK else units):
            for x in unit(*u, 16 + (k % 8)*4): a(x)
        a.stamp_out("1", 12, 14)
        a("s_endpgm")
    a.label("K1_END")
    a("s_endpgm")
    return a.text()
```

```python
from common import *
import math, struct
K2_LDS = 160*1024
CSCALE = (128 ** -0.5) * math.log2(math.e)
THR = 8.0
O0, Q0, SB, P0, FR, NEGM = 0, 64, [96, 128], 160, 176, 208
vL, vMX, vT0, vT1, vK, vV, vLANE16, vQI = 224, 225, 226, 227, 228, 229, 230, 231
VE = [232 + i for i in range(8)]
VW = [240, 241]
RW = [242, 243, 244, 245]
tL, t5, t6, t7 = 248, 249, 250, 251
vL2 = 246
WOFF = 48*1024
VBASE = 96*1024
def hexf(x): return "0x%08x" % struct.unpack("<I", struct.pack("<f", x))[0]

def gen_k2(D=8):
    a = Asm()
    a("s_cmp_ge_u32 s2, 256")
    a("s_cbranch_scc1 K2_END")
    a.stamp("2")
    a(f"s_load_dwordx2 s[4:5], s[0:1], {KA_WQ}")
    a(f"s_load_dwordx2 s[6:7], s[0:1], {KA_WS}")
    a(f"s_load_dwordx2 s[8:9], s[0:1], {KA_WO}")
    a(f"s_load_dwordx2 s[10:11], s[0:1], {KA_W1}")
    a(f"s_load_dwordx2 s[12:13], s[0:1], {KA_W2}")
    claim(a, 0, 256)
    a(f"v_and_b32 v{tL}, 63, v0")
    a(f"v_lshrrev_b32 v{t5}, 6, v0")
    a("s_nop 0")
    a(f"v_readfirstlane_b32 s14, v{t5}")
    a("s_and_b32 s15, s2, 7")
    a("s_lshl_b32 s15, s15, 2")
    a("s_bfe_u32 s16, s2, 0x20003")
    a("s_add_u32 s15, s15, s16")
    a("s_lshr_b32 s16, s2, 5")
    a("s_sub_u32 s17, 15, s16")
    a("s_lshl_b32 s18, s17, 1")
    a("s_add_u32 s18, s18, 2")
    a("s_cmp_ge_u32 s14, 4")
    a("s_cselect_b32 s19, s16, s17")
    a("s_cselect_b32 s60, 1, 0")
    a("s_lshl_b32 s61, s19, 1")
    a("s_add_u32 s61, s61, 2")
    a("s_and_b32 s62, s14, 3")
    a("s_lshl_b32 s63, s19, 2")
    a("s_add_u32 s63, s63, s62")
    a(f"v_lshlrev_b32 v{vLANE16}, 4, v{tL}")
    a(f"v_lshrrev_b32 v{t5}, 4, v{tL}")
    a(f"v_lshlrev_b32 v{t6}, 2, v{t5}")
    a(f"v_and_b32 v{t7}, 15, v{tL}")
    a(f"v_xor_b32 v{t6}, v{t6}, v{t7}")
    a("s_lshl_b32 s40, s14, 3")
    a(f"v_add_u32 v{t5}, s40, v{t5}")
    a(f"v_lshlrev_b32 v{t5}, 13, v{t5}")
    a(f"v_lshl_add_u32 v{t5}, v{t6}, 4, v{t5}")
    a("s_lshl_b32 s40, s15, 8")
    a(f"v_add_u32 v{VW[0]}, s40, v{t5}")
    a(f"v_add_u32 v{VW[1]}, {4*8192 - 1024}, v{VW[0]}")
    a("s_lshl_b32 s41, s14, 11")
    a("s_mul_i32 s42, s63, 40960")
    a("s_lshl_b32 s43, s15, 19")
    a("s_add_u32 s44, s43, s41")
    a("s_lshl_b32 s45, s62, 12")
    a("s_add_u32 s46, s43, s45")
    a("s_waitcnt lgkmcnt(0)")
    a.srd(20, 4, 5, 640*4096*2)
    a.srd(24, 6, 7, SZ_X, add=WS_XN)
    a.srd(28, 6, 7, 16*MB, add=WS_KT)
    a.srd(32, 6, 7, 16*MB, add=WS_VT)
    a.srd(36, 6, 7, 16*MB, add=WS_CTX)
    def dma_W(t):
        def f():
            a(f"s_add_u32 m0, s41, {WOFF + (t % 4)*16384}")
            a(f"s_mov_b32 s47, {t*64*8192}")
            for p in range(2):
                a.vmem(f"buffer_load_dwordx4 v{VW[p]}, s[20:23], s47 offen offset:{p*1024} lds", f"W{t}")
        return f
    def ld_x(n):
        def f():
            a(f"s_add_u32 s48, s42, {n*1024}")
            a.vmem(f"buffer_load_dwordx4 {vr((n % 16)*4, 4)}, v{vLANE16}, s[24:27], s48 offen", f"X{n}")
        return f
    def dma_KV(kind, j):
        def f():
            lds = (j % 4)*16384 if kind == "K" else VBASE + ((j + 2) % 4)*16384
            srd = "s[28:31]" if kind == "K" else "s[32:35]"
            a(f"s_add_u32 m0, s41, {lds}")
            a(f"s_add_u32 s47, s44, {j*16384}")
            for p in range(2):
                a.vmem(f"buffer_load_dwordx4 v{vLANE16}, {srd}, s47 offen offset:{p*1024} lds", "KV")
        return f
    dma_W(0)()
    for n in range(4): ld_x(n)()
    dma_W(1)()
    for n in range(4, 6): ld_x(n)()
    code_pf(a, 'k2_kernel', 14, 3)
    late = {0: [ld_x(6), ld_x(7), dma_W(2), ld_x(8), ld_x(9)], 1: [ld_x(10), ld_x(11), dma_W(3)], 2: [ld_x(12), ld_x(13)], 3: [ld_x(14), ld_x(15)]}
    a(f"v_bfe_u32 v{t5}, v{tL}, 2, 2")
    a(f"v_lshrrev_b32 v{t6}, 5, v{tL}")
    a(f"v_lshl_add_u32 v{t6}, v{t6}, 3, v{t5}")
    a(f"v_lshlrev_b32 v{t6}, 8, v{t6}")
    a(f"v_bfe_u32 v{t7}, v{tL}, 4, 1")
    a(f"v_lshl_add_u32 v{t6}, v{t7}, 5, v{t6}")
    a(f"v_and_b32 v{t7}, 3, v{tL}")
    a(f"v_lshl_add_u32 v{t6}, v{t7}, 3, v{t6}")
    a(f"v_add_u32 v{t6}, {WOFF}, v{t6}")
    for db in range(4):
        a(f"v_xor_b32 v{t7}, {db}, v{t5}")
        a(f"v_lshl_add_u32 v{RW[db]}, v{t7}, 6, v{t6}")
    a(f"v_and_b32 v{t5}, 31, v{tL}")
    a(f"v_lshrrev_b32 v{t6}, 5, v{tL}")
    a(f"v_lshlrev_b32 v{t6}, 2, v{t6}")
    a(f"v_sub_u32 v{t5}, v{t5}, v{t6}")
    a("s_lshl_b32 s40, s63, 5")
    a(f"v_add_u32 v{vQI}, s40, v{t5}")
    QA = lambda db: 96 + db*16
    FWq = lambda buf, db: 176 + buf*16 + db*4
    def readsA(n):
        t, ks, buf = n // 4, n % 4, n % 2
        return [f"ds_read_b64_tr_b16 {vr(FWq(buf, db) + 2*r2, 2)}, v{RW[db]} offset:{(t % 4)*16384 + (16*ks + 4*r2)*256}"
                for db in range(4) for r2 in range(2)]
    def mfA(n):
        buf = n % 2
        return [f"v_mfma_f32_32x32x16_bf16 {vr(QA(db), 16)}, {vr(FWq(buf, db), 4)}, {vr((n % 16)*4, 4)}, {'0' if n == 0 else vr(QA(db), 16)}"
                for db in range(4)]
    kvpro = [dma_KV("K", 0), dma_KV("K", 1), dma_KV("V", 0), dma_KV("K", 2), dma_KV("V", 1)]
    for n in range(41):
        fill = []
        tags = [f"X{n-1}"] if n >= 1 else []
        if n < 40 and n % 4 == 0:
            t = n // 4
            a.wait_vm(tags + [f"W{t}"], "lgkmcnt(0)")
            a("s_barrier")
            if n % 8 == 0: a.stamp("2")
            fill += readsA(n)
            if t >= 1 and t + 3 < 10: fill.append(dma_W(t + 3))
        else:
            a.wait_vm(tags, "lgkmcnt(0)")
            if n < 40: fill += readsA(n)
        fill += late.get(n, [])
        if n >= 2 and n - 2 + 16 < 40: fill.append(ld_x(n - 2 + 16))
        if n % int(OPT.get("k2_kvs", 4)) == 2 % int(OPT.get("k2_kvs", 4)) and kvpro and n >= int(OPT.get("k2_kv0", 6)): fill.append(kvpro.pop(0))
        if n == 0:
            for f in fill: f() if callable(f) else a(f)
        else:
            interleave(a, mfA(n - 1), fill, per_gap=3)
    assert not kvpro
    a("s_waitcnt vmcnt(0)")
    a("s_barrier")
    a.vm = []
    a.stamp("2"); a("s_waitcnt lgkmcnt(0)")
    def dma_stage():
        a("s_add_u32 s65, s64, 1")
        a("s_and_b32 s66, s65, 3")
        a("s_lshl_b32 s66, s66, 14")
        a("s_add_u32 m0, s66, s45")
        a("s_lshl_b32 s65, s65, 14")
        a("s_add_u32 s65, s65, s46")
        for p in range(4):
            a(f"buffer_load_dwordx4 v{vLANE16}, s[28:31], s65 offen offset:{p*1024} lds")
        a("s_add_u32 s66, s64, 2")
        a("s_and_b32 s66, s66, 3")
        a("s_lshl_b32 s66, s66, 14")
        a("s_add_u32 s66, s66, s45")
        a(f"s_add_u32 m0, s66, {VBASE}")
        a("s_sub_u32 s65, s65, 16384")
        for p in range(4):
            a(f"buffer_load_dwordx4 v{vLANE16}, s[32:35], s65 offen offset:{p*1024} lds")
    FLAG = 80*1024
    def kread(slot, n, vaddr): return f"ds_read_b128 {vr(FR + 4*(slot % 8), 4)}, v{vaddr} offset:{n*1024}"
    def qk(buf, n, cin):
        kb, st = n // 8, n % 8
        d = vr(SB[buf] + 16*kb, 16)
        c = cin if st == 0 else d
        return f"v_mfma_f32_32x32x16_bf16 {d}, {vr(FR + 4*(n % 8), 4)}, {vr(Q0 + 4*st, 4)}, {c}"
    def pv(n):
        c, db = n // 4, n % 4
        d = vr(O0 + 16*db, 16)
        return f"v_mfma_f32_32x32x16_bf16 {d}, {vr(FR + 4*(n % 8), 4)}, {vr(P0 + 4*c, 4)}, {d}"
    SP = [56, 58, 92, 94]
    def mask_ops(buf):
        out = [f"s_lshl_b32 s67, s54, 6", f"v_subrev_u32 v{vT1}, s67, v{vQI}", f"v_mov_b32 v{vT0}, s52"]
        for kb in range(2):
            for r0 in range(0, 16, 4):
                for r in range(r0, r0 + 4):
                    out.append(f"v_cmp_le_i32 s[{SP[r & 3]}:{SP[r & 3]+1}], {32*kb + 8*(r >> 2) + (r & 3)}, v{vT1}")
                for r in range(r0, r0 + 4):
                    sreg = SB[buf] + 16*kb + r
                    out.append(f"v_cndmask_b32 v{sreg}, v{vT0}, v{sreg}, s[{SP[r & 3]}:{SP[r & 3]+1}]")
        return out
    def max_ops(buf):
        s = SB[buf]
        ops = [f"v_max3_f32 v{vMX}, v{s}, v{s+1}, v{s+2}", f"v_max3_f32 v{vT0}, v{s+3}, v{s+4}, v{s+5}"]
        k = 6; tog = 0
        while k + 1 < 32:
            d = vMX if tog == 0 else vT0
            ops.append(f"v_max3_f32 v{d}, v{d}, v{s+k}, v{s+k+1}"); k += 2; tog ^= 1
        ops += [f"v_max_f32 v{vMX}, v{vMX}, v{vT0}", f"v_mov_b32 v{vT0}, v{vMX}", "s_nop 1",
                f"v_permlane32_swap_b32 v{vMX}, v{vT0}", f"v_max_f32 v{vMX}, v{vMX}, v{vT0}"]
        return ops
    def chunk_ops(buf, c):
        s = SB[buf] + 8*c
        ops = []
        for i in range(0, 8, 2):
            ops.append(f"v_exp_f32 v{VE[i]}, v{s+i}")
            ops.append(f"v_exp_f32 v{VE[i+1]}, v{s+i+1}")
            if i >= 2:
                ops.append(f"v_add_f32 v{vL}, v{vL}, v{VE[i-2]}")
                ops.append(f"v_cvt_pk_bf16_f32 v{P0 + 4*c + i//2 - 1}, v{VE[i-2]}, v{VE[i-1]}")
                ops.append(f"v_add_f32 v{vL2}, v{vL2}, v{VE[i-1]}")
        ops.append(f"v_add_f32 v{vL}, v{vL}, v{VE[6]}")
        ops.append(f"v_cvt_pk_bf16_f32 v{P0 + 4*c + 3}, v{VE[6]}, v{VE[7]}")
        ops.append(f"v_add_f32 v{vL2}, v{vL2}, v{VE[7]}")
        return ops
    def spread(ops, g0, g1, sched):
        cost = [8 if o.startswith("v_exp") else 4 for o in ops]
        tot = sum(cost); acc = 0
        for o, c in zip(ops, cost):
            sched[g0 + min(g1 - g0 - 1, int((acc + c/2) * (g1 - g0) / tot))].append(o); acc += c
    def sync_and_load(tagl, nw=8):
        def f():
            a("s_add_u32 s64, s51, 2")
            a("s_cmp_lt_u32 s64, s18")
            a(f"s_cbranch_scc1 {tagl}_w8")
            a("s_waitcnt vmcnt(0)")
            a.label(f"{tagl}_w8")
            a(f"s_waitcnt vmcnt({nw})")
            a("s_barrier")
        def g():
            a("s_cmp_eq_u32 s60, 0")
            a(f"s_cbranch_scc1 {tagl}_nl")
            a("s_add_u32 s64, s51, 3")
            a("s_cmp_ge_u32 s64, s18")
            a(f"s_cbranch_scc1 {tagl}_nl")
            if not OPT.get("k2_nodma"): dma_stage()
            a.label(f"{tagl}_nl")
        return f, g
    def updK():
        a("s_add_u32 s55, s51, 2"); a("s_and_b32 s55, s55, 3"); a("s_lshl_b32 s55, s55, 14")
        a(f"v_add_u32 v{vK}, s55, v{vLANE16}")
    def updV():
        a("s_add_u32 s55, s51, 3"); a("s_and_b32 s55, s55, 3"); a("s_lshl_b32 s55, s55, 14")
        a(f"s_add_u32 s55, s55, {VBASE}")
        a(f"v_add_u32 v{vV}, s55, v{vLANE16}")
    WS4 = OPT.get("k2_w2") is None
    def lwait(n):
        if WS4:
            if n % 4 == 0: a("s_waitcnt lgkmcnt(4)")
        elif n % 2 == 0: a("s_waitcnt lgkmcnt(6)")
    def body(name, cur, kind, safe):
        nxt = cur ^ 1
        a.label(name)
        f_sync, g_load = sync_and_load(name)
        if kind != 'L':
            sched = {n: [] for n in range(32)}
            ch = [chunk_ops(cur, c) for c in range(4)]
            v2 = []
            if kind == 'M': v2 += ["s_add_u32 s54, s51, 1"] + mask_ops(nxt)
            if safe: v2 += max_ops(nxt)
            if v2:
                spread(ch[0] + ch[1] + ch[2], 0, 16, sched)
                spread(ch[3], 16, 22, sched)
                spread(v2, 22, 32, sched)
            else:
                spread(ch[0] + ch[1] + ch[2] + ch[3], 0, 27, sched)
            for n in range(16):
                lwait(n)
                a(qk(nxt, n, vr(NEGM, 16)))
                a(kread(n, n + 8, vK) if n < 8 else kread(n, n - 8, vV))
                for x in sched[n]: a(x)
                if n == 8: updK()
            for n in range(16):
                lwait(n)
                if n == 8: f_sync()
                a(pv(n))
                if n < 8: a(kread(n, n + 8, vV))
                elif name.endswith("M0"): a(kread(n, n - 8, vV))
                else: a(kread(n, n - 8, vK))
                if n == 7: updV()
                if n == 12: g_load()
                for x in sched[16 + n]: a(x)
            if safe:
                a(f"v_cmp_lt_f32 vcc, s53, v{vMX}")
                a("s_add_u32 s51, s51, 1")
                a(f"s_cbranch_vccnz {name}_RS")
                a.label(f"{name}_RET")
            else: a("s_add_u32 s51, s51, 1")
        else:
            for x in chunk_ops(cur, 0): a(x)
            rest = [chunk_ops(cur, 1), chunk_ops(cur, 2), chunk_ops(cur, 3), []]
            a("s_nop 0")
            for n in range(16):
                if n < 8:
                    if n % 2 == 0: a("s_waitcnt lgkmcnt(6)")
                else: a(f"s_waitcnt lgkmcnt({15 - n})")
                if n == 8: f_sync()
                a(pv(n))
                if n < 8: a(kread(n, n + 8, vV))
                if n == 12: g_load()
                v = rest[n // 4]; q = n % 4
                per = -(-len(v) // 4)
                for x in v[q*per:(q+1)*per]: a(x)
                if q == 3: a("s_nop 1")
            a("s_add_u32 s51, s51, 1")
    def fbody(name, cur, kind, ph, role):
        nxt = cur ^ 1
        a.label(name)
        def kr(slot, fr, t): return f"ds_read_b128 {vr(FR + 4*(slot % 8), 4)}, v{vLANE16} offset:{((ph + t) & 3)*16384 + fr*1024}"
        def vrd(slot, fr, t): return f"ds_read_b128 {vr(FR + 4*(slot % 8), 4)}, v{vV} offset:{((ph + t + 2) & 3)*16384 + fr*1024}"
        def sync():
            if role == 'L': a("s_waitcnt vmcnt(8)")
            a("s_barrier")
        def skm(ins, what, n):
            k = 0
            if not OPT.get("k2_noskip"):
                if kind == 'M' and cur == 1: k = 1 if (what == "qk" and n >= 8) else 0
                elif kind == 'M': k = (2 if n < 8 else 3) if what == "qk" else (1 if n >= 8 else 0)
                elif kind == 'L': k = 2 if n < 8 else 3
            if not k: return a(ins)
            if n % 8 == 0:
                a(f"s_cmp_lt_u32 s62, {k}")
                a("s_cselect_b64 vcc, -1, 0")
            a(f"s_cbranch_vccnz {name}_{what}{n}")
            a(ins)
            a.label(f"{name}_{what}{n}")
        dm = {n: [] for n in range(16)}
        if role == 'L' and kind != 'L' and not OPT.get("k2_nodma"):
            dm[8].append(f"s_add_u32 m0, s45, {(ph & 3)*16384}")
            for p in range(4):
                dm[8 + p].append(f"buffer_load_dwordx4 v{vLANE16}, s[28:31], s96 offen offset:{p*1024} lds")
                dm[12 + p].append(f"buffer_load_dwordx4 v{vLANE16}, s[32:35], s97 offen offset:{p*1024} lds")
            dm[11].append(f"s_add_u32 m0, s45, {VBASE + ((ph + 1) & 3)*16384}")
            dm[15] += ["s_mov_b32 s97, s96", "s_add_u32 s96, s96, 16384"]
            dm[8].insert(1, "s_nop 0")
        if role == 'H' and kind == 'U' and ph % 2 == 0 and not OPT.get("nopf"):
            for q, srd in enumerate(("s[20:23]", "s[24:27]", "s[96:99]")):
                dm[12 + q].append(f"buffer_load_dwordx4 {vr((248, 252, 240)[q], 4)}, v{vLANE16}, {srd}, s65 offen")
            dm[15].append(f"s_add_u32 s65, s65, {1 << 20}")
        if kind != 'L':
            sched = {n: [] for n in range(32)}
            ch = [chunk_ops(cur, c) for c in range(4)]
            if kind == 'M':
                spread(ch[0] + ch[1] + ch[2], 0, 16, sched)
                spread(ch[3], 16, 22, sched)
                spread(["s_add_u32 s54, s51, 1"] + mask_ops(nxt), 22, 32, sched)
            else:
                spread(ch[0] + ch[1] + ch[2] + ch[3], 0, 27, sched)
            for n in range(16):
                lwait(n)
                skm(qk(nxt, n, vr(NEGM, 16)), "qk", n)
                a(kr(n, n + 8, 1) if n < 8 else vrd(n, n - 8, 0))
                for x in sched[n]: a(x)
            for n in range(16):
                lwait(n)
                if n == 8: sync()
                skm(pv(n), "pv", n)
                if n < 8: a(vrd(n, n + 8, 0))
                elif kind == 'M' and cur == 0: a(vrd(n, n - 8, 1))
                else: a(kr(n, n - 8, 2))
                for x in dm[n]: a(x)
                for x in sched[16 + n]: a(x)
            a("s_add_u32 s51, s51, 1")
        else:
            f_sync, g_load = sync_and_load(name)
            for x in chunk_ops(cur, 0): a(x)
            rest = [chunk_ops(cur, 1), chunk_ops(cur, 2), chunk_ops(cur, 3), []]
            a("s_nop 0")
            for n in range(16):
                if n < 8:
                    if n % 2 == 0: a("s_waitcnt lgkmcnt(6)")
                else: a(f"s_waitcnt lgkmcnt({15 - n})")
                if n == 8: sync()
                skm(pv(n), "pv", n)
                if n < 8: a(vrd(n, n + 8, 0))
                if n == 12 and role == 'L': g_load()
                v = rest[n // 4]; q = n % 4
                per = -(-len(v) // 4)
                for x in v[q*per:(q+1)*per]: a(x)
                if q == 3: a("s_nop 1")
            a("s_add_u32 s51, s51, 1")
    def floop(P, role):
        P = P + role
        fbody(f"{P}_U0", 0, 'U', 0, role)
        a("s_cmp_ge_u32 s51, s49")
        a(f"s_cbranch_scc1 {P}_M1a")
        fbody(f"{P}_U1", 1, 'U', 1, role)
        fbody(f"{P}_U2", 0, 'U', 2, role)
        a("s_cmp_ge_u32 s51, s49")
        a(f"s_cbranch_scc1 {P}_M1b")
        fbody(f"{P}_U3", 1, 'U', 3, role)
        a(f"s_branch {P}_U0")
        fbody(f"{P}_M1a", 1, 'M', 1, role)
        fbody(f"{P}_M0a", 0, 'M', 2, role)
        fbody(f"{P}_L1a", 1, 'L', 3, role)
        a("s_branch K2F_EPI")
        fbody(f"{P}_M1b", 1, 'M', 3, role)
        fbody(f"{P}_M0b", 0, 'M', 0, role)
        fbody(f"{P}_L1b", 1, 'L', 1, role)
        if role == 'L': a("s_branch K2F_EPI")
    def rescale(name, nxt):
        a.label(f"{name}_RS")
        a("s_nop 7"); a("s_nop 7")
        a(f"v_max_f32 v{vMX}, 0, v{vMX}")
        a(f"v_sub_f32 v{vT0}, 0, v{vMX}")
        a(f"v_exp_f32 v{vT0}, v{vT0}")
        for i in range(32): a(f"v_sub_f32 v{SB[nxt]+i}, v{SB[nxt]+i}, v{vMX}")
        for i in range(16): a(f"v_sub_f32 v{NEGM+i}, v{NEGM+i}, v{vMX}")
        for i in range(64): a(f"v_mul_f32 v{O0+i}, v{O0+i}, v{vT0}")
        a(f"v_mul_f32 v{vL}, v{vL}, v{vT0}")
        a(f"v_mul_f32 v{vL2}, v{vL2}, v{vT0}")
        a("s_nop 1")
        a(f"s_branch {name}_RET")
    def attn(P, safe):
        a("s_cmp_eq_u32 s60, 0")
        a(f"s_cbranch_scc1 {P}_NOS2")
        a("s_mov_b32 s64, 2")
        dma_stage()
        a.label(f"{P}_NOS2")
        for n in range(8): a(kread(n, n, vLANE16))
        if not safe:
            for db in range(4):
                for t in range(2):
                    for i in range(4):
                        r = QA(db) + 8*t + 2*i
                        a(f"v_cvt_pk_bf16_f32 v{Q0 + (2*db + t)*4 + i}, v{r}, v{r+1}")
            a(f"v_mov_b32 v{vT0}, 0")
            a(f"v_mov_b32 v{vT1}, {FLAG}")
            a(f"ds_write_b32 v{vT1}, v{vT0}")
        a(f"v_add_u32 v{vK}, 16384, v{vLANE16}")
        a(f"v_add_u32 v{vV}, {VBASE + 2*16384}, v{vLANE16}")
        a("s_mov_b32 s51, 0")
        a(f"s_mov_b32 s52, {hexf(-1e30)}")
        a(f"s_mov_b32 s53, {hexf(THR)}")
        a("s_waitcnt lgkmcnt(0)")
        zero = [f"v_mov_b32 v{O0+i}, 0" for i in range(64)] + [f"v_mov_b32 v{vL}, 0", f"v_mov_b32 v{vL2}, 0"]
        for n in range(16):
            if n >= 8: a(f"s_waitcnt lgkmcnt(7)")
            a(qk(0, n, "0"))
            a(kread(n, n + 8, vLANE16) if n < 8 else kread(n, n - 8, vK))
            for x in zero[4*n:4*n+4]: a(x)
        for x in zero[64:]: a(x)
        a("s_mov_b32 s54, 0")
        a("s_nop 7"); a("s_nop 3")
        a("s_cmp_eq_u32 s61, 2")
        a(f"s_cbranch_scc0 {P}_NOM")
        for x in mask_ops(0): a(x)
        a.label(f"{P}_NOM")
        for x in max_ops(0): a(x)
        for i in range(16): a(f"v_sub_f32 v{NEGM+i}, 0, v{vMX}")
        for i in range(32): a(f"v_sub_f32 v{SB[0]+i}, v{SB[0]+i}, v{vMX}")
        if OPT.get("stamp") == "2" and not safe: a.stamp("2"); a("s_waitcnt lgkmcnt(0)")
        a("s_sub_u32 s49, s61, 3")
        if safe:
            a("s_cmp_eq_u32 s61, 2")
            a(f"s_cbranch_scc1 {P}_M0")
            body(f"{P}_U0", 0, 'U', safe)
            a("s_cmp_ge_u32 s51, s49")
            a(f"s_cbranch_scc1 {P}_M1")
            body(f"{P}_U1", 1, 'U', safe)
            a(f"s_branch {P}_U0")
            body(f"{P}_M1", 1, 'M', safe)
            body(f"{P}_M0", 0, 'M', safe)
            body(f"{P}_L1", 1, 'L', safe)
        else:
            a(f"v_add_u32 v{vV}, {VBASE}, v{vLANE16}")
            a("s_add_u32 s96, s46, 65536")
            a("s_add_u32 s97, s46, 49152")
            a("s_cmp_eq_u32 s60, 0")
            a(f"s_cbranch_scc1 {P}H_PRE")
            a("s_cmp_eq_u32 s61, 2")
            a(f"s_cbranch_scc1 {P}L_M0b")
            floop(P, 'L')
            a.label(f"{P}H_PRE")
            a.srd(20, 8, 9, 4096*640*2)
            a.srd(24, 10, 11, 2048*1728*2)
            a.srd(96, 12, 13, 2048*1728*2)
            a("s_lshl_b32 s65, s2, 2")
            a("s_add_u32 s65, s65, s62")
            a("s_lshl_b32 s65, s65, 10")
            floop(P, 'H')
            a.label("K2F_EPI")
        if not safe: a.stamp("2")
        a(f"v_add_f32 v{vL}, v{vL}, v{vL2}")
        a(f"v_mov_b32 v{vT0}, v{vL}")
        a("s_nop 1")
        a(f"v_permlane32_swap_b32 v{vL}, v{vT0}")
        a(f"v_add_f32 v{vL}, v{vL}, v{vT0}")
        a(f"v_mov_b32 v{vMX}, v{vL}")
        a(f"v_rcp_f32 v{vL}, v{vL}")
        a("s_lshl_b32 s55, s63, 18")
        a("s_lshl_b32 s56, s15, 13")
        a("s_add_u32 s55, s55, s56")
        a("s_nop 7")
        for db in range(4):
            for t in range(2):
                d = 96 + (2*db + t)*4
                for i in range(4):
                    r = O0 + 16*db + 8*t + 2*i
                    if not safe:
                        a(f"v_add_f32 v{vMX}, v{vMX}, |v{r}|")
                        a(f"v_add_f32 v{vMX}, v{vMX}, |v{r+1}|")
                    a(f"v_mul_f32 v{r}, v{r}, v{vL}")
                    a(f"v_mul_f32 v{r+1}, v{r+1}, v{vL}")
                    a(f"v_cvt_pk_bf16_f32 v{d+i}, v{r}, v{r+1}")
                if (2*db + t) % 4 == 0 and (2*db + t): a("s_add_u32 s55, s55, 4096")
                a(f"buffer_store_dwordx4 {vr(d, 4)}, v{vLANE16}, s[36:39], s55 offen offset:{((2*db + t) % 4)*1024} {OPT.get('k2_st', 'sc1')}")
        if not safe:
            a(f"v_mov_b32 v{vT0}, {hexf(2.0**100)}")
            a(f"v_cmp_nlt_f32 vcc, v{vMX}, v{vT0}")
            a("s_nop 1")
            a(f"s_cbranch_vccz {P}_LD")
            a(f"v_mov_b32 v{vT0}, 1")
            a(f"v_mov_b32 v{vT1}, {FLAG}")
            a(f"ds_write_b32 v{vT1}, v{vT0}")
        PF = False
        if PF:
            a.label(f"{P}_LD")
            a("s_cmp_ge_u32 s51, s18")
            a(f"s_cbranch_scc1 {P}_FIN")
            a.srd(20, 8, 9, 4096*640*2)
            a.srd(24, 10, 11, 2048*1728*2)
            a.srd(56, 12, 13, 2048*1728*2)
            a("s_lshl_b32 s98, s16, 5")
            a("s_add_u32 s98, s98, s15")
            a("s_lshl_b32 s98, s98, 2")
            a("s_add_u32 s98, s98, s62")
            a("s_lshl_b32 s98, s98, 10")
            a("s_cmp_ge_u32 s16, 4")
            a("s_cselect_b32 s98, 0x40000000, s98")
            f_sync, g_load = sync_and_load(f"{P}_LDY")
            f_sync(); g_load()
            a("s_add_u32 s51, s51, 1")
            def pf():
                for q, srd in enumerate(("s[20:23]", "s[24:27]", "s[56:59]")):
                    a(f"buffer_load_dwordx4 {vr(160 + 4*q, 4)}, v{vLANE16}, {srd}, s98 offen")
                a(f"s_add_u32 s98, s98, {512*1024}")
            pf()
            f_sync, g_load = sync_and_load(f"{P}_LDZ", 11)
            f_sync(); g_load()
            a("s_add_u32 s51, s51, 1")
            a.label(f"{P}_LD2")
            a("s_cmp_ge_u32 s51, s18")
            a(f"s_cbranch_scc1 {P}_FIN")
            pf()
            f_sync, g_load = sync_and_load(f"{P}_LDX", 14)
            f_sync(); g_load()
            a("s_add_u32 s51, s51, 1")
            a(f"s_branch {P}_LD2")
        else:
            a.label(f"{P}_LD")
            a("s_cmp_ge_u32 s51, s18")
            a(f"s_cbranch_scc1 {P}_FIN")
            f_sync, g_load = sync_and_load(f"{P}_LDX")
            f_sync(); g_load()
            a("s_add_u32 s51, s51, 1")
            a(f"s_branch {P}_LD")
        if safe:
            rescale(f"{P}_U0", 1); rescale(f"{P}_U1", 0); rescale(f"{P}_M1", 0); rescale(f"{P}_M0", 1)
        a.label(f"{P}_FIN")
    attn("K2F", False)
    a(f"v_mov_b32 v{vT1}, {FLAG}")
    a("s_waitcnt vmcnt(0) lgkmcnt(0)")
    a("s_barrier")
    a(f"ds_read_b32 v{vT0}, v{vT1}")
    a("s_waitcnt lgkmcnt(0)")
    a(f"v_readfirstlane_b32 s55, v{vT0}")
    a.stamp_out("2", 6, 14)
    a("s_cmp_eq_u32 s55, 0")
    a("s_cbranch_scc1 K2_END")
    for f in [dma_KV("K", 0), dma_KV("K", 1), dma_KV("V", 0), dma_KV("K", 2), dma_KV("V", 1)]: f()
    a("s_waitcnt vmcnt(0)")
    a("s_barrier")
    attn("K2S", True)
    a.label("K2_END")
    a("s_endpgm")
    return a.text()
```

```python
from common import *
K3_LDS = 160*1024
PART_SPLIT = 64*40*1024
NSPLIT = 4
def gen_k3():
    a = Asm()
    a("s_cmp_ge_u32 s2, 256")
    a("s_cbranch_scc1 K3_END")
    a.stamp("3")
    a(f"s_load_dwordx2 s[4:5], s[0:1], {KA_WO}")
    a(f"s_load_dwordx2 s[6:7], s[0:1], {KA_WS}")
    L, T0, T1, T2, LN16 = 248, 249, 250, 251, 252
    RD = [253, 254, 255, T2]
    VD = [123+i for i in range(5)]
    a(f"v_and_b32 v{L}, 63, v0")
    a(f"v_lshrrev_b32 v{T0}, 6, v0")
    a("s_nop 0")
    a(f"v_readfirstlane_b32 s14, v{T0}")
    a("s_and_b32 s15, s2, 3")
    a("s_bfe_u32 s16, s2, 0x20003")
    a("s_lshr_b32 s17, s2, 5")
    a("s_bfe_u32 s18, s2, 0x10002")
    a("s_lshl_b32 s18, s18, 3")
    a("s_add_u32 s17, s17, s18")
    a("s_and_b32 s51, s14, 3")
    a("s_lshr_b32 s52, s14, 2")
    a("s_lshl_b32 s18, s17, 2")
    a("s_add_u32 s18, s18, s51")
    a(f"v_lshlrev_b32 v{LN16}, 4, v{L}")
    a("s_mul_i32 s19, s16, 320")
    a("s_mul_i32 s40, s51, 16*1280")
    a("s_add_u32 s19, s19, s40")
    a("s_movk_i32 s41, 3277")
    a("s_movk_i32 s42, 1280")
    for p in range(5):
        a(f"v_add_u32 v{T0}, {64*p}, v{L}")
        a(f"v_mul_u32_u24 v{T1}, s41, v{T0}")
        a(f"v_lshrrev_b32 v{T1}, 16, v{T1}")
        a(f"v_mul_u32_u24 v{T2}, 20, v{T1}")
        a(f"v_sub_u32 v{T0}, v{T0}, v{T2}")
        a(f"v_mul_u32_u24 v{T1}, s42, v{T1}")
        a(f"v_lshl_add_u32 v{T0}, v{T0}, 4, v{T1}")
        a(f"v_add_u32 v{T0}, s19, v{T0}")
        a(f"v_add_u32 v{VD[p]}, {(-(p % 4)*1024) & 0xffffffff}, v{T0}")
    a("s_mul_i32 s43, s14, 5120")
    a("s_lshl_b32 s53, s15, 1")
    a("s_add_u32 s53, s53, s52")
    a("s_mul_i32 s44, s53, 512*1280")
    a("s_lshl_b32 s45, s18, 18")
    a("s_lshl_b32 s46, s53, 15")
    a("s_add_u32 s45, s45, s46")
    a("s_waitcnt lgkmcnt(0)")
    a.srd(20, 4, 5, 4096*640*2)
    a.srd(24, 6, 7, 16*MB, add=WS_CTX)
    a.srd(28, 6, 7, NSPLIT*PART_SPLIT, add=WS_PART)
    def dma_W(g):
        def f():
            a(f"s_add_u32 m0, s43, {(g % 4)*40960}")
            a(f"s_add_u32 s47, s44, {g*64*1280}")
            for p in range(4):
                a.vmem(f"buffer_load_dwordx4 v{VD[p]}, s[20:23], s47 offen offset:{p*1024} lds", f"W{g}")
            a(f"s_add_u32 m0, s43, {(g % 4)*40960 + 4096}")
            a("s_nop 0")
            a.vmem(f"buffer_load_dwordx4 v{VD[4]}, s[20:23], s47 offen lds", f"W{g}")
        return f
    def ld_x(n):
        def f():
            a(f"s_add_u32 s48, s45, {n*1024}")
            a.vmem(f"buffer_load_dwordx4 {vr(4*n, 4)}, v{LN16}, s[24:27], s48 offen", f"X{n}")
        return f
    dma_W(0)()
    for n in range(4): ld_x(n)()
    dma_W(1)()
    late = {0: [ld_x(4), ld_x(5), ld_x(6), ld_x(7)], 1: [dma_W(2)], 2: [ld_x(8), ld_x(9), ld_x(10), ld_x(11)], 3: [dma_W(3)]}
    for g in range(4, 8):
        n0 = 4*(g - 3)
        late[n0] = [ld_x(n0 + 8), ld_x(n0 + 9)]; late[n0 + 1] = [ld_x(n0 + 10), ld_x(n0 + 11)]; late[n0 + 2] = [dma_W(g)]
    late[19] = [ld_x(28), ld_x(29)]; late[20] = [ld_x(30), ld_x(31)]
    a.stamp("3")
    a(f"v_bfe_u32 v{T0}, v{L}, 2, 2")
    a(f"v_lshrrev_b32 v{T1}, 5, v{L}")
    a(f"v_lshl_add_u32 v{T0}, v{T1}, 2, v{T0}")
    a(f"v_mul_u32_u24 v{T0}, 320, v{T0}")
    a(f"v_bfe_u32 v{T1}, v{L}, 4, 1")
    a(f"v_lshl_add_u32 v{T0}, v{T1}, 5, v{T0}")
    a(f"v_and_b32 v{T1}, 3, v{L}")
    a(f"v_lshl_add_u32 v{RD[0]}, v{T1}, 3, v{T0}")
    a("s_mul_i32 s54, s52, 20480")
    a(f"v_add_u32 v{RD[0]}, s54, v{RD[0]}")
    for st in range(1, 4): a(f"v_add_u32 v{RD[st]}, {st*40960}, v{RD[0]}")
    ACC = lambda mb: 128 + 16*mb
    FW = lambda buf, mb: 208 + (buf*5 + mb)*4
    def reads(n):
        g, k = n // 4, n % 4
        return [f"ds_read_b64_tr_b16 {vr(FW(n % 2, mb) + 2*r2, 2)}, v{RD[g % 4]} offset:{(16*k + 8*r2)*320 + 64*mb}"
                for mb in range(5) for r2 in range(2)]
    def mf(n):
        return [f"v_mfma_f32_32x32x16_bf16 {vr(ACC(mb), 16)}, {vr(FW(n % 2, mb), 4)}, {vr(4*n, 4)}, {'0' if n == 0 else vr(ACC(mb), 16)}"
                for mb in range(5)]
    for n in range(33):
        tags = [f"X{n-1}"] if n else []
        fill = []
        if n < 32 and n % 4 == 0:
            a.wait_vm(tags + [f"W{n//4}"], "lgkmcnt(0)")
            a("s_barrier")
            if n % 8 == 0: a.stamp("3")
        else:
            a.wait_vm(tags, "lgkmcnt(0)")
        if n < 32: fill = reads(n)
        fill += late.get(n, [])
        if n == 0:
            for f in fill: f() if callable(f) else a(f)
        else: interleave(a, mf(n - 1), fill, per_gap=3)
    a.stamp("3")
    a("s_mul_i32 s54, s14, 10240")
    a(f"v_add_u32 v{T0}, s54, v{LN16}")
    a("s_xor_b32 s55, s14, 4")
    a("s_mul_i32 s55, s55, 10240")
    a(f"v_add_u32 v{T1}, s55, v{LN16}")
    a(f"s_mul_i32 s49, s15, {PART_SPLIT}")
    a("s_mul_i32 s50, s18, 40960")
    a("s_add_u32 s49, s49, s50")
    a("s_mul_i32 s50, s16, 10240")
    a("s_add_u32 s49, s49, s50")
    a("s_mul_i32 s50, s52, 5120")
    a("s_add_u32 s49, s49, s50")
    a("s_add_u32 s50, s49, 4096")
    a("s_cmp_eq_u32 s52, 0")
    a("s_cbranch_scc0 K3_KH1")
    for kh in range(2):
        if kh: a.label("K3_KH1")
        mine = 128 + 40*kh; other = 128 + 40*(1 - kh)
        for i in range(10): a(f"ds_write_b128 v{T0}, {vr(other + 4*i, 4)} offset:{1024*i}")
        a("s_waitcnt lgkmcnt(0)")
        a("s_barrier")
        for i in range(10): a(f"ds_read_b128 {vr(4*i, 4)}, v{T1} offset:{1024*i}")
        for hb in range(5):
            a(f"s_waitcnt lgkmcnt({8 - 2*hb})")
            for i in range(8): a(f"v_add_f32 v{mine + 8*hb + i}, v{mine + 8*hb + i}, v{8*hb + i}")
            for i in range(4): a(f"v_cvt_pk_bf16_f32 v{64 + 4*hb + i}, v{mine + 8*hb + 2*i}, v{mine + 8*hb + 2*i + 1}")
            a(f"buffer_store_dwordx4 {vr(64 + 4*hb, 4)}, v{LN16}, s[28:31], s{49 if hb < 4 else 50} offen offset:{(hb % 4)*1024} {OPT.get('k3_st', 'sc1')}")
        nst = getattr(a, "nst", 0)
        a.stamp_out("3", 6, 14)
        a.nst = nst
        a("s_endpgm")
    a.label("K3_END")
    a("s_endpgm")
    return a.text()

K4_LDS = 16*1024
def gen_k4():
    a = Asm()
    a("s_cmp_ge_u32 s2, 256")
    a("s_cbranch_scc1 K4_END")
    a(f"s_load_dwordx2 s[4:5], s[0:1], {KA_X}")
    a(f"s_load_dwordx2 s[6:7], s[0:1], {KA_WS}")
    a("v_and_b32 v1, 7, v0")
    a("v_lshrrev_b32 v2, 3, v0")
    a("s_lshl_b32 s14, s2, 3")
    a("v_add_u32 v3, s14, v1")
    a("s_lshr_b32 s15, s2, 2")
    a("s_mul_i32 s16, s15, 40960")
    a("v_and_b32 v4, 31, v3")
    a("v_lshlrev_b32 v4, 4, v4")
    a("v_lshl_add_u32 v4, v2, 10, v4")
    a("v_add_u32 v4, s16, v4")
    a("s_movk_i32 s17, 1280")
    a("v_mul_u32_u24 v5, s17, v3")
    a("v_lshl_add_u32 v5, v2, 5, v5")
    a("s_waitcnt lgkmcnt(0)")
    a.srd(20, 4, 5, SZ_X)
    a.srd(24, 6, 7, NSPLIT*PART_SPLIT, add=WS_PART)
    a.srd(28, 6, 7, SZ_X, add=WS_H)
    a.srd(32, 6, 7, SZ_X, add=WS_HN)
    for sp in range(NSPLIT):
        a(f"s_mov_b32 s18, {sp*PART_SPLIT}")
        a.vmem(f"buffer_load_dwordx4 {vr(32 + 8*sp, 4)}, v4, s[24:27], s18 offen", f"P{sp}")
        a.vmem(f"buffer_load_dwordx4 {vr(36 + 8*sp, 4)}, v4, s[24:27], s18 offen offset:512", f"P{sp}")
    a.vmem("buffer_load_dwordx4 v[96:99], v5, s[20:23], 0 offen", "x")
    a.vmem("buffer_load_dwordx4 v[100:103], v5, s[20:23], 0 offen offset:16", "x")
    a("v_mul_u32_u24 v6, 80, v1")
    a("v_lshrrev_b32 v7, 4, v0")
    a("v_lshl_add_u32 v7, v7, 2, v6")
    src = [0, 1, 4, 5, 2, 3, 6, 7]
    V = lambda i: 16 + i
    for sp in range(NSPLIT):
        a.wait_vm([f"P{sp}"])
        for j in range(8):
            r = 32 + 8*sp + src[j]
            if sp == 0:
                a(f"v_lshlrev_b32 v{V(2*j)}, 16, v{r}")
                a(f"v_and_b32 v{V(2*j+1)}, 0xffff0000, v{r}")
            else:
                a(f"v_lshlrev_b32 v8, 16, v{r}")
                a(f"v_and_b32 v9, 0xffff0000, v{r}")
                a(f"v_add_f32 v{V(2*j)}, v{V(2*j)}, v8")
                a(f"v_add_f32 v{V(2*j+1)}, v{V(2*j+1)}, v9")
    a.wait_vm(["x"])
    for j in range(8):
        a(f"v_cvt_pk_bf16_f32 v8, v{V(2*j)}, v{V(2*j+1)}")
        a(f"v_lshlrev_b32 v{V(2*j)}, 16, v8")
        a(f"v_and_b32 v{V(2*j+1)}, 0xffff0000, v8")
        a(f"v_lshlrev_b32 v8, 16, v{96+j}")
        a(f"v_and_b32 v9, 0xffff0000, v{96+j}")
        a(f"v_add_f32 v{V(2*j)}, v{V(2*j)}, v8")
        a(f"v_add_f32 v{V(2*j+1)}, v{V(2*j+1)}, v9")
        a(f"v_cvt_pk_bf16_f32 v{32+j}, v{V(2*j)}, v{V(2*j+1)}")
        a(f"v_lshlrev_b32 v{V(2*j)}, 16, v{32+j}")
        a(f"v_and_b32 v{V(2*j+1)}, 0xffff0000, v{32+j}")
    a("buffer_store_dwordx4 v[32:35], v5, s[28:31], 0 offen")
    a("buffer_store_dwordx4 v[36:39], v5, s[28:31], 0 offen offset:16")
    red = [0]
    def row_sum(v):
        base = 12288 + red[0]*1024; red[0] += 1
        a("s_nop 1")
        a(f"v_add_f32_dpp {v}, {v}, {v} row_ror:8 row_mask:0xf bank_mask:0xf")
        a(f"ds_write_b32 v7, {v} offset:{base}")
        a("s_waitcnt lgkmcnt(0)")
        a("s_barrier")
        for i in range(5): a(f"ds_read_b128 {vr(40 + 4*i, 4)}, v6 offset:{base + 16*i}")
        a("s_waitcnt lgkmcnt(0)")
        a(f"v_add_f32 {v}, v40, v41")
        for i in range(2, 20): a(f"v_add_f32 {v}, {v}, v{40+i}")
        a(f"v_mul_f32 {v}, {1.0/640}, {v}")
    for ln in range(2):
        a(f"v_add_f32 v10, v{V(0)}, v{V(1)}")
        for i in range(2, 16): a(f"v_add_f32 v10, v10, v{V(i)}")
        row_sum("v10")
        a(f"v_sub_f32 v8, v{V(0)}, v10")
        a("v_mul_f32 v11, v8, v8")
        for i in range(1, 16):
            a(f"v_sub_f32 v8, v{V(i)}, v10")
            a("v_fmac_f32 v11, v8, v8")
        row_sum("v11")
        bf16r(a, "v11", "v11")
        a("v_add_f32 v11, 0x3727c5ac, v11")
        bf16r(a, "v11", "v11")
        a("v_sqrt_f32 v11, v11")
        a("s_nop 0")
        bf16r(a, "v11", "v11")
        a("v_rcp_f32 v11, v11")
        bf16r(a, "v10", "v10")
        for j in range(8):
            x0, x1 = V(2*j), V(2*j+1)
            a(f"v_sub_f32 v{x0}, v{x0}, v10")
            a(f"v_sub_f32 v{x1}, v{x1}, v10")
            a(f"v_cvt_pk_bf16_f32 v8, v{x0}, v{x1}")
            a(f"v_lshlrev_b32 v{x0}, 16, v8")
            a(f"v_and_b32 v{x1}, 0xffff0000, v8")
            a(f"v_mul_f32 v{x0}, v{x0}, v11")
            a(f"v_mul_f32 v{x1}, v{x1}, v11")
            a(f"v_cvt_pk_bf16_f32 v{64+j}, v{x0}, v{x1}")
            if ln == 0:
                a(f"v_lshlrev_b32 v{x0}, 16, v{64+j}")
                a(f"v_and_b32 v{x1}, 0xffff0000, v{64+j}")
    a("s_movk_i32 s17, 272")
    a("v_mul_u32_u24 v8, s17, v2")
    a("v_lshl_add_u32 v8, v1, 1, v8")
    for j in range(8):
        a(f"ds_write_b16 v8, v{64+j} offset:{32*j}")
        a(f"ds_write_b16_d16_hi v8, v{64+j} offset:{32*j+16}")
    a("v_lshrrev_b32 v9, 4, v0")
    a("v_add_u32 v10, v9, v0")
    a("v_lshlrev_b32 v10, 4, v10")
    a("v_and_b32 v11, 15, v0")
    a("v_lshlrev_b32 v11, 4, v11")
    a("v_lshl_add_u32 v11, v9, 16, v11")
    a("s_lshl_b32 s18, s15, 10")
    a("s_and_b32 s19, s2, 3")
    a("s_lshl_b32 s19, s19, 8")
    a("s_add_u32 s18, s18, s19")
    a("s_waitcnt lgkmcnt(0)")
    a("s_barrier")
    a("ds_read_b128 v[40:43], v10")
    a(f"ds_read_b128 v[44:47], v10 offset:{340*16}")
    a(f"s_add_u32 s19, s18, {20*65536}")
    a("s_waitcnt lgkmcnt(1)")
    a("buffer_store_dwordx4 v[40:43], v11, s[32:35], s18 offen")
    a("s_waitcnt lgkmcnt(0)")
    a("buffer_store_dwordx4 v[44:47], v11, s[32:35], s19 offen")
    a.label("K4_END")
    a("s_endpgm")
    return a.text()
```

```python
from common import *
import math, struct
def hexf(x): return "0x%08x" % struct.unpack("<I", struct.pack("<f", x))[0]
K5_LDS = 160*1024
SZ_U = 40*54*1024

def gen_k56(which, fin=False, fout=False):
    k5 = which == 5
    P = "K5" if k5 else "K6"
    NWG = 216 if k5 else 256
    PER = 27 if k5 else 32
    NS = 8 if k5 else 7
    RS = 3456 if k5 else 4096
    XS = 64 if k5 else 54
    a = Asm()
    a(f"s_cmp_ge_u32 s2, {NWG}")
    a(f"s_cbranch_scc1 {P}_END")
    a.stamp(str(which))
    a(f"s_load_dwordx4 s[4:7], s[0:1], {KA_W1 if k5 else KA_W2}")
    a(f"s_load_dwordx2 s[8:9], s[0:1], {KA_WS}")
    if not k5: a(f"s_load_dwordx2 s[10:11], s[0:1], {KA_OUT}")
    claim(a, 2 if k5 else 3, 192 if k5 else 256)
    XR = lambda n, db: (n % 6)*20 + db*4
    ACC = lambda db, cb: 120 + (db*4 + cb)*4
    FW = lambda buf, cb: 200 + buf*16 + cb*4
    VD = [232, 233, 234, 235]; RW = [236, 237, 238, 239]
    LN16, L, T0, T1, T2, TID = 240, 241, 242, 243, 244, 245
    BI = 246
    a(f"v_mov_b32 v{TID}, v0")
    a(f"v_and_b32 v{L}, 63, v0")
    a(f"v_lshrrev_b32 v{T0}, 6, v0")
    a("s_nop 0")
    a(f"v_readfirstlane_b32 s14, v{T0}")
    a("s_and_b32 s15, s2, 7")
    a(f"s_mul_i32 s15, s15, {PER}")
    a("s_lshr_b32 s16, s2, 3")
    a("s_add_u32 s16, s16, s15")
    a("s_lshr_b32 s15, s16, 3")
    a("s_and_b32 s16, s16, 7")
    a(f"v_lshlrev_b32 v{LN16}, 4, v{L}")
    a(f"v_lshrrev_b32 v{T0}, 3, v{L}")
    a(f"s_movk_i32 s17, {RS}")
    a(f"v_mul_u32_u24 v{T0}, s17, v{T0}")
    a("s_lshl_b32 s18, s15, 7")
    a(f"v_add_u32 v{T0}, s18, v{T0}")
    a(f"v_bfe_u32 v{T1}, v{L}, 4, {1 if k5 else 2}")
    a(f"v_lshlrev_b32 v{T1}, 1, v{T1}")
    a(f"v_and_b32 v{T2}, 7, v{L}")
    a(f"v_xor_b32 v{T1}, v{T1}, v{T2}")
    for p in range(4):
        if k5 and (p & 1):
            a(f"v_xor_b32 v{T2}, 4, v{T1}")
            a(f"v_lshl_add_u32 v{VD[p]}, v{T2}, 4, v{T0}")
        else:
            a(f"v_lshl_add_u32 v{VD[p]}, v{T1}, 4, v{T0}")
        if p: a(f"v_add_u32 v{VD[p]}, {8*p*RS - p*1024}, v{VD[p]}")
    a(f"s_mul_i32 s19, s14, {NS*32*RS}")
    a("s_mul_i32 s50, s14, 20480")
    a(f"s_mul_i32 s51, s16, {5*XS*1024}")
    a(f"s_mul_i32 s52, s14, {NS*1024}")
    a("s_add_u32 s51, s51, s52")
    for db in range(5):
        a(f"s_add_u32 s{40+db}, s51, {db*XS*1024}")
        a(f"s_add_u32 s{45+db}, s51, {db*XS*1024 + 4096}")
    ROT = OPT.get("k5_rot")
    if ROT:
        a({"1": "s_add_u32 s59, s15, s16", "2": "s_mov_b32 s59, s16", "3": "s_mov_b32 s59, s15"}[ROT])
        a("s_and_b32 s59, s59, 7")
        a(f"s_cmp_ge_u32 s59, {NS}")
        a("s_cselect_b32 s59, 0, s59")
        for n in range(NS):
            a(f"s_add_u32 s{60+n}, s59, {n}")
            a(f"s_cmp_ge_u32 s{60+n}, {NS}")
            a(f"s_cselect_b32 s58, {NS}, 0")
            a(f"s_sub_u32 s{60+n}, s{60+n}, s58")
    a("s_waitcnt lgkmcnt(0)")
    a.srd(20, 4, 5, 2048*1728*2)
    if k5:
        a.srd(24, 8, 9, SZ_X, add=WS_HN)
        a.srd(28, 8, 9, SZ_U, add=WS_U)
        a.srd(32, 6, 7, 1728*2)
    else:
        a.srd(24, 8, 9, SZ_U, add=WS_U)
        a.srd(28, 10, 11, SZ_X)
        a.srd(32, 6, 7, 2048*2)
        a.srd(36, 8, 9, SZ_X, add=WS_H)
    if fin or fout: a.srd(60, 8, 9, FLAG_SZ, add=WS_FLAG)
    def dma_W(n):
        def f():
            a(f"s_add_u32 m0, s50, {(n % 5)*4096}")
            if ROT:
                a(f"s_mul_i32 s53, s{60+n}, {32*RS}")
                a("s_add_u32 s53, s53, s19")
                a(f"s_lshl_b32 s{60+n}, s{60+n}, 10")
            else: a(f"s_add_u32 s53, s19, {n*32*RS}")
            for p in range(4):
                a.vmem(f"buffer_load_dwordx4 v{VD[p]}, s[20:23], s53 offen offset:{p*1024} lds", f"W{n}")
        return f
    def ld_x(n, db):
        def f():
            if ROT:
                a(f"s_add_u32 s{45+db}, s{40+db}, s{60+n}")
                a.vmem(f"buffer_load_dwordx4 {vr(XR(n, db), 4)}, v{LN16}, s[24:27], s{45+db} offen", f"X{n}")
            else: a.vmem(f"buffer_load_dwordx4 {vr(XR(n, db), 4)}, v{LN16}, s[24:27], s{40 + 5*(n // 4) + db} offen offset:{(n % 4)*1024}", f"X{n}")
        return f
    LA = int(OPT.get("k5_la", 2))
    if fin:
        LA = int(OPT.get("k5_lax", 2))
        a("s_cmp_eq_u32 s14, 0")
        a(f"s_cbranch_scc1 {P}_NOPF")
        for n in range(5): dma_W(n)()
        a.label(f"{P}_NOPF")
    else:
        for n in range(LA):
            dma_W(n)()
            for db in range(5): ld_x(n, db)()
        code_pf(a, f'k{which}_kernel', 14, 1)
    a.stamp(str(which))
    a(f"v_bfe_u32 v{T0}, v{L}, 2, 2")
    a(f"v_lshrrev_b32 v{T1}, 4, v{L}")
    a(f"v_lshl_add_u32 v{T2}, v{T1}, {3 if k5 else 2}, v{T0}")
    a(f"v_lshlrev_b32 v{T2}, 7, v{T2}")
    a(f"v_add_u32 v{T2}, s50, v{T2}")
    a(f"v_and_b32 v{RW[0]}, 3, v{L}")
    a(f"v_lshl_add_u32 v{T2}, v{RW[0]}, 3, v{T2}")
    a(f"v_lshrrev_b32 v{T0}, 1, v{T0}")
    a(f"v_and_b32 v{T1}, 1, v{T1}")
    a(f"v_lshl_add_u32 v{T0}, v{T1}, 1, v{T0}")
    for cb in range(4):
        a(f"v_xor_b32 v{T1}, {cb}, v{T0}")
        a(f"v_lshl_add_u32 v{RW[cb]}, v{T1}, 5, v{T2}")
    R2 = 512 if k5 else 2048
    extra = []
    if k5:
        a(f"v_lshrrev_b32 v{T0}, 4, v{L}")
        a(f"v_lshlrev_b32 v{T0}, 3, v{T0}")
        for cb in range(4):
            a.vmem(f"buffer_load_dwordx2 {vr(BI + 2*cb, 2)}, v{T0}, s[32:35], s18 offen offset:{32*cb}", "B")
    else:
        GO = [246, 247]; RA = [248, 249]; BO = [250, 251]
        a("s_movk_i32 s54, 6554")
        a("s_movk_i32 s55, 1280")
        a("s_mul_i32 s56, s15, 64*1280")
        a("s_mul_i32 s57, s16, 160")
        a("s_add_u32 s56, s56, s57")
        for q in range(2):
            a(f"v_add_u32 v{T0}, {512*q}, v{TID}")
            a(f"v_mul_u32_u24 v{T1}, s54, v{T0}")
            a(f"v_lshrrev_b32 v{T1}, 16, v{T1}")
            a(f"v_mul_u32_u24 v{T2}, 10, v{T1}")
            a(f"v_sub_u32 v{T0}, v{T0}, v{T2}")
            a(f"v_mul_u32_u24 v{T2}, s55, v{T1}")
            a(f"v_lshl_add_u32 v{GO[q]}, v{T0}, 4, v{T2}")
            a(f"v_lshlrev_b32 v{BO[q]}, 1, v{T1}")
            a(f"v_lshlrev_b32 v{T2}, 1, v{T0}")
            a(f"v_xor_b32 v{T2}, v{T2}, v{T1}")
            a(f"v_and_b32 v{T2}, 15, v{T2}")
            a(f"v_lshlrev_b32 v{T2}, 4, v{T2}")
            a(f"v_lshrrev_b32 v{T1}, 4, v{T1}")
            a(f"v_lshl_add_u32 v{T2}, v{T1}, 10, v{T2}")
            a(f"v_and_b32 v{T1}, 1, v{T0}")
            a(f"v_lshl_add_u32 v{T2}, v{T1}, 9, v{T2}")
            a(f"v_lshrrev_b32 v{T1}, 1, v{T0}")
            a(f"v_lshl_add_u32 v{RA[q]}, v{T1}, 12, v{T2}")
        HR = [20, 24]; BR = [28, 29]
        def ld_h():
            for q in range(2):
                if q == 1:
                    a("s_cmp_ge_u32 s14, 2")
                    a("s_cselect_b32 s58, 0x7fffffff, s56")
                    a("s_cselect_b32 s59, 0x7fffffff, s18")
                a.vmem(f"buffer_load_dwordx4 {vr(HR[q], 4)}, v{GO[q]}, s[36:39], s{56 if q == 0 else 58} offen", "H")
                a.vmem(f"buffer_load_ushort v{BR[q]}, v{BO[q]}, s[32:35], s{18 if q == 0 else 59} offen", "H")
        extra = [ld_h]
    def reads(n):
        return [f"ds_read_b64_tr_b16 {vr(FW(n % 2, cb) + 2*r2, 2)}, v{RW[cb]} offset:{(n % 5)*4096 + r2*R2}"
                for cb in range(4) for r2 in range(2)]
    def mf(n):
        m = []
        for cb in range(4):
            for db in range(5):
                c = vr(ACC(db, cb), 4)
                w, x = vr(FW(n % 2, cb), 4), vr(XR(n, db), 4)
                ab = f"{w}, {x}" if k5 else f"{x}, {w}"
                m.append(f"v_mfma_f32_16x16x32_bf16 {c}, {ab}, {'0' if n == 0 else c}")
        return m
    if fin:
        if k5:
            a(f"s_movk_i32 s58, {FL_HN}")
            wait_flags(a, 60, 14, L, T0, 0, 59, "s58", 64, w4=True)
        else:
            a(f"s_lshl_b32 s58, s16, 7")
            wait_flags(a, 60, 14, L, T0, T1, 59, "s58", 27)
        a.stamp(str(which))
        a("s_cmp_lg_u32 s14, 0")
        a(f"s_cbranch_scc1 {P}_HAVEW")
        vm_save = list(a.vm)
        for n in range(5): dma_W(n)()
        a.vm = vm_save
        a.label(f"{P}_HAVEW")
        for n in range(LA):
            for db in range(5): ld_x(n, db)()
    for n in range(NS + 1):
        tags = ([f"X{n-1}"] if n else []) + ([f"W{n}"] if n < NS else [])
        a.wait_vm(tags, "lgkmcnt(0)")
        a.stamp(str(which))
        fill = []
        if n < NS: fill += reads(n)
        if fin:
            if n + LA < NS: fill += [ld_x(n + LA, db) for db in range(5)]
            if n >= 1 and n + 4 < NS: fill += [dma_W(n + 4)]
        elif n + LA < NS: fill += [dma_W(n + LA)] + [ld_x(n + LA, db) for db in range(5)]
        if n == 5: fill += extra
        if n == 0:
            for f in fill: f() if callable(f) else a(f)
        else: interleave(a, mf(n - 1)[:1 if OPT.get("k5_nomfma") else 20], fill, per_gap=1)
    if k5:
        a(f"v_add_u32 v{T0}, s50, v{LN16}")
        WR = lambda db: T0
    else:
        a(f"v_lshrrev_b32 v{T1}, 4, v{L}")
        a(f"v_lshlrev_b32 v{T1}, 4, v{T1}")
        a(f"v_xor_b32 v{T1}, v{T1}, v{LN16}")
        a(f"v_add_u32 v{T1}, s50, v{T1}")
        for db in range(4): a(f"v_xor_b32 v{FW(NS % 2, db)}, {64*db}, v{T1}")
        WR = lambda db: FW(NS % 2, db & 3)
    a("s_nop 7")
    for cb in range(4):
        for db in range(5):
            a(f"ds_write_b128 v{WR(db)}, {vr(ACC(db, cb), 4)} offset:{(db*4 + cb)*1024}")
    if k5:
        a("s_lshl_b32 s54, s14, 12")
        a(f"v_add_u32 v{T0}, s54, v{LN16}")
        a(f"v_add_u32 v{T1}, 81920, v{T0}")
        a("s_waitcnt vmcnt(0) lgkmcnt(0)")
        a("s_barrier")
        a.stamp(str(which))
        a("s_cmp_ge_u32 s14, 5")
        a(f"s_cbranch_scc1 {P}_END")
        c1 = -2*math.log2(math.e)*0.7978845608028654
        a(f"s_mov_b32 s56, {hexf(c1)}")
        a(f"v_mov_b32 v{T2}, {hexf(c1*0.044715)}")
        a("s_mul_i32 s57, s16, 5")
        a("s_add_u32 s57, s57, s14")
        a("s_mul_i32 s57, s57, 54*1024")
        a("s_lshl_b32 s58, s15, 11")
        a("s_add_u32 s57, s57, s58")
        def rd(cb, ww): return f"ds_read_b128 {vr(cb*32 + ww*4, 4)}, v{T0 if ww < 4 else T1} offset:{(ww % 4)*20480 + cb*1024}"
        for ww in range(8): a(rd(0, ww))
        for cb in range(4):
            if cb < 3:
                for ww in range(7): a(rd(cb + 1, ww))
                a("s_waitcnt lgkmcnt(7)")
                a(rd(cb + 1, 7))
            else: a("s_waitcnt lgkmcnt(0)")
            b = cb*32
            for st in (16, 8, 4):
                for i in range(st): a(f"v_add_f32 v{b+i}, v{b+i}, v{b+st+i}")
            for j in range(2):
                x0, x1, t0, t1 = b + 2*j, b + 2*j + 1, b + 8 + 2*j, b + 9 + 2*j
                a(f"v_cvt_pk_bf16_f32 v{t0}, v{x0}, v{x1}")
                a(f"v_lshlrev_b32 v{x0}, 16, v{t0}")
                a(f"v_and_b32 v{x1}, 0xffff0000, v{t0}")
                a(f"v_lshlrev_b32 v{t0}, 16, v{BI + 2*cb + j}")
                a(f"v_and_b32 v{t1}, 0xffff0000, v{BI + 2*cb + j}")
                a(f"v_add_f32 v{x0}, v{x0}, v{t0}")
                a(f"v_add_f32 v{x1}, v{x1}, v{t1}")
                a(f"v_cvt_pk_bf16_f32 v{t0}, v{x0}, v{x1}")
                a(f"v_lshlrev_b32 v{x0}, 16, v{t0}")
                a(f"v_and_b32 v{x1}, 0xffff0000, v{t0}")
                for x, t in ((x0, t0), (x1, t1)):
                    a(f"v_mul_f32 v{t}, v{x}, v{x}")
                    a(f"v_fma_f32 v{t}, v{t}, v{T2}, s56")
                    a(f"v_mul_f32 v{t}, v{t}, v{x}")
                    a(f"v_exp_f32 v{t}, v{t}")
                for x, t in ((x0, t0), (x1, t1)): a(f"v_add_f32 v{t}, 1.0, v{t}")
                for x, t in ((x0, t0), (x1, t1)): a(f"v_rcp_f32 v{t}, v{t}")
                a("s_nop 0")
                for x, t in ((x0, t0), (x1, t1)): a(f"v_mul_f32 v{x}, v{x}, v{t}")
                a(f"v_cvt_pk_bf16_f32 v{128 + 2*cb + j}, v{x0}, v{x1}")
            if cb & 1:
                a(f"buffer_store_dwordx4 {vr(128 + 4*(cb >> 1), 4)}, v{LN16}, s[28:31], s57 offen offset:{(cb >> 1)*1024} {'sc1' if fout else OPT.get('k5_st', 'sc1')}")
        if fout:
            a("s_lshl_b32 s58, s16, 5")
            a("s_add_u32 s58, s58, s15")
            a("s_lshl_b32 s58, s58, 2")
            signal(a, 60, 14, 0, 1, "s58")
    else:
        for q in range(2):
            a(f"v_xor_b32 v{VD[q]}, 16, v{RA[q]}")
            a(f"v_add_u32 v{VD[2+q]}, 81920, v{RA[q]}")
            a(f"v_add_u32 v{RW[q]}, 81920, v{VD[q]}")
        a("s_waitcnt vmcnt(0) lgkmcnt(0)")
        a("s_barrier")
        for q in range(2):
            if q == 1:
                a("s_cmp_ge_u32 s14, 2")
                a(f"s_cbranch_scc1 {P}_END")
            b = 32 + q*64
            def rd(hf, ww):
                base = (RA[q] if hf == 0 else VD[q]) if ww < 4 else (VD[2+q] if hf == 0 else RW[q])
                return f"ds_read_b128 {vr(b + hf*32 + ww*4, 4)}, v{base} offset:{(ww % 4)*20480 + hf*256}"
            for ww in range(8): a(rd(0, ww))
            for ww in range(7): a(rd(1, ww))
            a(f"v_lshlrev_b32 v{BR[q]}, 16, v{BR[q]}")
            for hf in range(2):
                if hf == 0:
                    a("s_waitcnt lgkmcnt(7)")
                    a(rd(1, 7))
                else: a("s_waitcnt lgkmcnt(0)")
                bb = b + hf*32
                for st in (16, 8, 4):
                    for i in range(st): a(f"v_add_f32 v{bb+i}, v{bb+i}, v{bb+st+i}")
                for j in range(2):
                    x0, x1, t0, t1 = bb + 2*j, bb + 2*j + 1, bb + 8 + 2*j, bb + 9 + 2*j
                    hreg = HR[q] + 2*hf + j
                    a(f"v_cvt_pk_bf16_f32 v{t0}, v{x0}, v{x1}")
                    a(f"v_lshlrev_b32 v{x0}, 16, v{t0}")
                    a(f"v_and_b32 v{x1}, 0xffff0000, v{t0}")
                    a(f"v_add_f32 v{x0}, v{x0}, v{BR[q]}")
                    a(f"v_add_f32 v{x1}, v{x1}, v{BR[q]}")
                    a(f"v_cvt_pk_bf16_f32 v{t0}, v{x0}, v{x1}")
                    a(f"v_lshlrev_b32 v{x0}, 16, v{t0}")
                    a(f"v_and_b32 v{x1}, 0xffff0000, v{t0}")
                    a(f"v_lshlrev_b32 v{t0}, 16, v{hreg}")
                    a(f"v_and_b32 v{t1}, 0xffff0000, v{hreg}")
                    a(f"v_add_f32 v{x0}, v{x0}, v{t0}")
                    a(f"v_add_f32 v{x1}, v{x1}, v{t1}")
                    a(f"v_cvt_pk_bf16_f32 v{hreg}, v{x0}, v{x1}")
            a(f"buffer_store_dwordx4 {vr(HR[q], 4)}, v{GO[q]}, s[28:31], s56 offen {OPT.get('k6_st', 'sc1')}")
    a.stamp_out(str(which), 8, 14)
    a.label(f"{P}_END")
    a("s_endpgm")
    return a.text()
```

```python
import sys, os
sys.path.insert(0, os.path.dirname(os.path.abspath(__file__)))
from common import *
from k1 import gen_k1, K1_LDS
from k2 import gen_k2, K2_LDS
from k3 import gen_k3, gen_k4, K3_LDS, K4_LDS
from k5 import gen_k56, K5_LDS
def build(path, opts=None):
    OPT.clear(); OPT.update(opts or {})
    ref = open(f"cdna_kernels/{NAME}.s.ref").read().split("\n")
    hdr = [l for l in ref if l.startswith(";") and not l.startswith("; @launch")]
    ks = [("k1_kernel", gen_k1(), 256, 512, K1_LDS, 256),
          ("k2_kernel", gen_k2(), 256, 512, K2_LDS, 256),
          ("k3_kernel", gen_k3(), 256, 512, K3_LDS, 256),
          ("k4_kernel", gen_k4(), 256, 320, K4_LDS, 104),
          ("k5_kernel", gen_k56(5), 216, 512, K5_LDS, 256),
          ("k6_kernel", gen_k56(6), 256, 512, K5_LDS, 256)]
    fz = int(OPT.get("fuse", 0))
    def chain(parts):
        t = ""
        for i, p in enumerate(parts):
            if i < len(parts) - 1: t += f"    s_cmp_ge_u32 s2, 256\n    s_cbranch_scc1 ROLE{i+1}\n"
            t += p
            if i < len(parts) - 1: t += f"ROLE{i+1}:\n    s_sub_u32 s2, s2, 256\n"
        return t
    if fz == 2:
        ks = ks[:2] + [("k3_kernel", gen_k3(fuse=True), 256, 512, K3_LDS, 256)] + ks[4:]
    if fz == 1:
        ks = ks[:4] + [("k5_kernel", chain([gen_k56(5, fout=True), gen_k56(6, fin=True)]), 512, 512, K5_LDS, 256)]
    out = "\n".join(hdr) + "\n"
    for n, _, g, b, lds, _ in ks:
        out += f"; @launch kernel={n} grid=({g},1,1) block=({b},1,1) lds={lds}\n"
    out += '.amdgcn_target "amdgcn-amd-amdhsa--gfx950"\n.text\n'
    for n, t, *_ in ks:
        out += kernel_header(n) + t + f"{n}_end:\n"
    out += "code_end:\n"
    out += '.section .rodata,"a"\n'
    for n, _, _, _, _, v in ks:
        out += kernel_desc(n, v)
    open(path, "w").write(out)
    print(path, len(out))
if __name__ == "__main__":
    build(sys.argv[1] if len(sys.argv) > 1 else f"cdna_kernels/{NAME}.s", dict((x.split("=") + [1])[:2] for x in sys.argv[2:]))
```

```python
NAME = "sequential_preLN__compressed_kv_cla__mixer_token_mlp__prompt"
KA_X, KA_CKV, KA_WQ, KA_WUK, KA_WUV, KA_WO, KA_BX, KA_W1, KA_B1, KA_W2, KA_B2, KA_OUT, KA_DBG, KA_WS = [8*i for i in range(14)]
MB = 1 << 20
OPT = {}
WS_XN   = 0
WS_KT   = 4*MB
WS_VT   = 20*MB
WS_CTX  = 36*MB
WS_PART = 52*MB
WS_H    = 96*MB
WS_HN   = 100*MB
WS_U    = 104*MB
SZ_X = 2048*640*2
WS_FLAG = 110*MB
FL_U, FL_HN, FL_PART, FL_CTX = 0, 1024, 2048, 3072
FL_CNT = 4096
FLAG_SZ = 4096 + 16384

class Asm:
    def __init__(self):
        self.lines = []
        self.vm = []
    def __call__(self, s):
        self.lines.append("    " + s)
    def label(self, l):
        self.lines.append(l + ":")
    def comment(self, s):
        self.lines.append("    ; " + s)
    def vmem(self, s, tag):
        self(s); self.vm.append(tag)
    def vm_count_for(self, tags):
        last = -1
        for i, t in enumerate(self.vm):
            if t in tags: last = i
        n = len(self.vm) - 1 - last
        self.vm = self.vm[last+1:]
        return n if last >= 0 else None
    def wait_vm(self, tags, extra=""):
        n = self.vm_count_for(tags)
        if n is None:
            if extra: self("s_waitcnt " + extra)
            return
        assert n <= 63
        self(("s_waitcnt vmcnt(%d) " % n + extra).strip())
    def srd(self, d, lo, hi, size, add=0):
        if add:
            self(f"s_add_u32 s{d}, s{lo}, {add}")
            self(f"s_addc_u32 s{d+1}, s{hi}, 0")
            self(f"s_and_b32 s{d+1}, s{d+1}, 0xffff")
        else:
            self(f"s_mov_b32 s{d}, s{lo}")
            self(f"s_and_b32 s{d+1}, s{hi}, 0xffff")
        self(f"s_mov_b32 s{d+2}, {size}")
        self(f"s_mov_b32 s{d+3}, 0x00020000")
    def stamp(self, k):
        if k in str(OPT.get("stamp", "")):
            i = getattr(self, "nst", 0); self.nst = i + 1
            self(f"{OPT.get('rt', 's_memtime')} s[{70+2*i}:{71+2*i}]")
    def stamp_out(self, k, wslo, wave):
        if k in str(OPT.get("stamp", "")):
            self("s_waitcnt vmcnt(0) lgkmcnt(0)")
            self.stamp(k)
            self("s_waitcnt lgkmcnt(0)")
            self.srd(64, wslo, wslo+1, 1*MB, add=120*MB + 131072*str(OPT['stamp']).index(k))
            self(f"s_lshl_b32 s68, s2, 3"); self(f"s_add_u32 s68, s68, s{wave}"); self("s_lshl_b32 s68, s68, 6")
            self("v_mov_b32 v0, 0")
            for i in range(self.nst):
                self(f"v_mov_b32 v1, s{70+2*i}")
                self(f"buffer_store_dword v1, v0, s[64:67], s68 offen offset:{4*i}")
    def text(self):
        return "\n".join(self.lines) + "\n"

def kernel_header(name):
    return f".globl {name}\n.p2align 8\n.type {name},@function\n{name}:\n"

def kernel_desc(name, vgpr, sgpr=102, accum=None):
    if accum is None: accum = (vgpr + 3)//4*4
    return f""".p2align 6
.amdhsa_kernel {name}
  .amdhsa_next_free_vgpr {vgpr}
  .amdhsa_next_free_sgpr {sgpr}
  .amdhsa_accum_offset {accum}
  .amdhsa_group_segment_fixed_size 0
  .amdhsa_kernarg_size 112
  .amdhsa_user_sgpr_count 2
  .amdhsa_user_sgpr_kernarg_segment_ptr 1
  .amdhsa_system_sgpr_workgroup_id_x 1
  .amdhsa_float_denorm_mode_32 3
.end_amdhsa_kernel
"""

def vr(b, n): return f"v[{b}:{b+n-1}]"

def interleave(a, mfmas, fillers, first_gap=0, per_gap=None):
    nf = len(fillers); nm = len(mfmas)
    if per_gap is None:
        per_gap = -(-nf // max(1, nm - first_gap))
    fi = 0
    for i, m in enumerate(mfmas):
        a(m)
        if i >= first_gap:
            for _ in range(per_gap):
                if fi < nf:
                    f = fillers[fi]; fi += 1
                    f() if callable(f) else a(f)
    while fi < nf:
        f = fillers[fi]; fi += 1
        f() if callable(f) else a(f)

def wave_sum(a, v, tmp, s0):
    a("s_nop 1")
    a(f"v_add_f32_dpp {v}, {v}, {v} quad_perm:[1,0,3,2] row_mask:0xf bank_mask:0xf")
    a("s_nop 1")
    a(f"v_add_f32_dpp {v}, {v}, {v} quad_perm:[2,3,0,1] row_mask:0xf bank_mask:0xf")
    a("s_nop 1")
    a(f"v_add_f32_dpp {v}, {v}, {v} row_half_mirror row_mask:0xf bank_mask:0xf")
    a("s_nop 1")
    a(f"v_add_f32_dpp {v}, {v}, {v} row_mirror row_mask:0xf bank_mask:0xf")
    a("s_nop 1")
    for i in range(4):
        a(f"v_readlane_b32 s{s0+i}, {v}, {16*i}")
    a("s_nop 1")
    a(f"v_mov_b32 {v}, s{s0}")
    for i in range(1, 4):
        a(f"v_add_f32 {v}, s{s0+i}, {v}")

def bf16r(a, dst, src, tmp=None):
    a(f"v_cvt_pk_bf16_f32 {dst}, {src}, {src}")
    a(f"v_and_b32 {dst}, 0xffff0000, {dst}")

_wf = [0]
def wait_flags(a, srd, wave, lane, vt, vf, scnt, soff, n, w4=False):
    _wf[0] += 1; i = _wf[0]
    a(f"s_cmp_lg_u32 s{wave}, 0")
    a(f"s_cbranch_scc1 WF_SKIP{i}")
    a(f"v_lshlrev_b32 v{vt}, {4 if w4 else 2}, v{lane}")
    if n < 64: a(f"s_mov_b64 exec, {(1 << n) - 1}")
    a(f"s_mov_b32 s{scnt}, 0x40000")
    a.label(f"WF_LOOP{i}")
    if w4: a(f"buffer_load_dwordx4 v[{vf}:{vf+3}], v{vt}, s[{srd}:{srd+3}], {soff} offen sc1")
    else: a(f"buffer_load_dword v{vf}, v{vt}, s[{srd}:{srd+3}], {soff} offen sc1")
    a("s_waitcnt vmcnt(0)")
    if w4:
        a(f"v_min_u32 v{vf}, v{vf}, v{vf+1}")
        a(f"v_min3_u32 v{vf}, v{vf}, v{vf+2}, v{vf+3}")
    a(f"v_cmp_eq_u32 vcc, 0, v{vf}")
    a("s_cmp_eq_u64 vcc, 0")
    a(f"s_cbranch_scc1 WF_DONE{i}")
    a(f"s_sleep {OPT.get('slp', 4)}")
    a(f"s_sub_u32 s{scnt}, s{scnt}, 1")
    a(f"s_cbranch_scc0 WF_LOOP{i}")
    a.label(f"WF_DONE{i}")
    if n < 64: a("s_mov_b64 exec, -1")
    a.label(f"WF_SKIP{i}")
    a("s_barrier")

def signal(a, srd, wave, v0, v1, soff):
    _wf[0] += 1; i = _wf[0]
    a(f"v_mov_b32 v{v0}, 1")
    a(f"v_mov_b32 v{v1}, 0")
    a("s_waitcnt vmcnt(0)")
    a("s_barrier")
    a(f"s_cmp_lg_u32 s{wave}, 0")
    a(f"s_cbranch_scc1 SG_SKIP{i}")
    a("s_mov_b64 exec, 1")
    a(f"buffer_store_dword v{v0}, v{v1}, s[{srd}:{srd+3}], {soff} offen sc1")
    a("s_mov_b64 exec, -1")
    a.label(f"SG_SKIP{i}")

def claim(a, k, whole):
    if not OPT.get("claim"): return
    P = f"CL{k}"
    a(f"s_load_dwordx2 s[88:89], s[0:1], {KA_WS}")
    a("s_getreg_b32 s90, hwreg(HW_REG_XCC_ID, 0, 4)")
    a("v_readfirstlane_b32 s91, v0")
    if whole < 256:
        a(f"s_cmp_ge_u32 s2, {whole}")
        a(f"s_cbranch_scc1 {P}_END")
    a("v_mov_b32 v2, 0")
    a("s_cmp_lg_u32 s91, 0")
    a(f"s_cbranch_scc1 {P}_WAIT")
    a("s_lshr_b32 s91, s2, 6")
    a("s_lshl_b32 s91, s91, 10")
    a(f"s_add_u32 s91, s91, {FL_CNT + k*4096}")
    a("s_mov_b64 exec, 1")
    a("s_waitcnt lgkmcnt(0)")
    a.srd(92, 88, 89, FLAG_SZ, add=WS_FLAG)
    a("s_mov_b32 s88, 8")
    a.label(f"{P}_TRY")
    a("s_and_b32 s90, s90, 7")
    a("s_lshl_b32 s89, s90, 7")
    a("s_add_u32 s89, s89, s91")
    a("v_mov_b32 v1, 1")
    a("buffer_atomic_add v1, v2, s[92:95], s89 offen sc0 sc1")
    a("s_waitcnt vmcnt(0)")
    a("v_readfirstlane_b32 s89, v1")
    a("s_cmp_lt_u32 s89, 8")
    a(f"s_cbranch_scc1 {P}_GOT")
    a("s_add_u32 s90, s90, 1")
    a("s_sub_u32 s88, s88, 1")
    a("s_cmp_lg_u32 s88, 0")
    a(f"s_cbranch_scc1 {P}_TRY")
    a.label(f"{P}_GOT")
    a("s_and_b32 s89, s89, 7")
    a("s_and_b32 s90, s90, 7")
    a("s_lshl_b32 s89, s89, 3")
    a("s_or_b32 s89, s89, s90")
    a("v_mov_b32 v1, s89")
    a("ds_write_b32 v2, v1")
    a("s_mov_b64 exec, -1")
    a("s_waitcnt lgkmcnt(0)")
    a.label(f"{P}_WAIT")
    a("s_barrier")
    a("ds_read_b32 v1, v2")
    a("s_andn2_b32 s2, s2, 63")
    a("s_waitcnt lgkmcnt(0)")
    a("v_readfirstlane_b32 s89, v1")
    a("s_barrier")
    a("s_or_b32 s2, s2, s89")
    a.label(f"{P}_END")
```

```python
from common import *
from k2 import hexf, CSCALE
K1_LDS = 160*1024
A_SLOT = [0, 32768, 65536]
W_SLOT = [98304 + 16384*i for i in range(4)]

def gen_k1():
    a = Asm()
    a("s_cmp_ge_u32 s2, 256")
    a("s_cbranch_scc1 K1_END")
    a.stamp("1")
    a(f"s_load_dwordx4 s[4:7], s[0:1], {KA_X}")
    a(f"s_load_dwordx4 s[8:11], s[0:1], {KA_WUK}")
    a(f"s_load_dwordx2 s[12:13], s[0:1], {KA_WS}")
    a(f"s_load_dwordx2 s[60:61], s[0:1], {KA_WQ}")
    a("v_and_b32 v1, 63, v0")
    a("v_lshrrev_b32 v2, 6, v0")
    a("s_nop 0")
    a("v_readfirstlane_b32 s14, v2")
    a("s_and_b32 s15, s2, 7")
    a("s_lshr_b32 s16, s2, 3")
    a("s_and_b32 s17, s16, 7")
    a("s_lshr_b32 s18, s16, 3")
    a("s_lshl_b32 s19, s15, 2")
    a("s_add_u32 s18, s18, s19")
    a("s_and_b32 s19, s18, 15")
    a("s_waitcnt lgkmcnt(0)")
    a.srd(20, 4, 5, SZ_X)
    a.srd(24, 6, 7, 2048*512*2)
    a("s_cmp_lt_u32 s18, 16")
    a("s_cselect_b32 s8, s8, s10")
    a("s_cselect_b32 s9, s9, s11")
    a(f"s_cselect_b32 s3, 0, {WS_VT - WS_KT}")
    a(f"s_or_b32 s3, s3, {WS_KT}")
    a.srd(28, 8, 9, 512*4096*2)
    a.srd(60, 60, 61, 640*4096*2)
    a("s_lshl_b32 s64, s2, 3")
    a("s_add_u32 s64, s64, s14")
    a("s_mul_i32 s64, s64, 3072")
    a.srd(32, 12, 13, SZ_X, add=WS_XN)
    a("s_add_u32 s36, s12, s3")
    a("s_addc_u32 s37, s13, 0")
    a("s_and_b32 s37, s37, 0xffff")
    a(f"s_mov_b32 s38, {16*MB}")
    a("s_mov_b32 s39, 0x00020000")
    if OPT.get("fuse") or OPT.get("claim"):
        a.srd(96, 12, 13, FLAG_SZ, add=WS_FLAG)
        a("s_lshl_b32 s40, s2, 3")
        a("s_add_u32 s40, s40, s14")
        a(f"s_cmp_ge_u32 s40, {FLAG_SZ//1024}")
        a("s_cbranch_scc1 K1_NOZ")
        a("v_lshlrev_b32 v3, 4, v0")
        for i in range(4): a(f"v_mov_b32 v{4+i}, 0")
        a("s_lshl_b32 s40, s2, 13")
        a("buffer_store_dwordx4 v[4:7], v3, s[96:99], s40 offen")
        a.label("K1_NOZ")
    a("s_lshl_b32 s40, s2, 3")
    a("s_add_u32 s40, s40, s14")
    a("s_mul_i32 s41, s40, 1280")
    a("v_lshlrev_b32 v3, 5, v1")
    a("v_add_u32 v3, s41, v3")
    a("v_cmp_gt_u32 vcc, 40, v1")
    a("v_mov_b32 v4, 0x80000000")
    a("s_nop 0")
    a("v_cndmask_b32 v3, v4, v3, vcc")
    a.vmem("buffer_load_dwordx4 v[8:11], v3, s[20:23], 0 offen", "x")
    a.vmem("buffer_load_dwordx4 v[12:15], v3, s[20:23], 0 offen offset:16", "x")
    VA = [200, 201, 202, 203]; VW = [204, 205]
    a("v_lshrrev_b32 v5, 3, v1")
    a("s_lshl_b32 s42, s17, 8")
    a("s_lshl_b32 s43, s14, 5")
    a("s_add_u32 s42, s42, s43")
    a("v_add_u32 v5, s42, v5")
    a("v_lshlrev_b32 v5, 10, v5")
    a("v_lshrrev_b32 v6, 4, v1")
    a("v_and_b32 v7, 7, v1")
    for p in range(4):
        a(f"v_xor_b32 v16, {(4*p)&7}, v6")
        a("v_xor_b32 v16, v16, v7")
        a("v_lshl_add_u32 v16, v16, 4, v5")
        a(f"v_add_u32 v{VA[p]}, {p*8*1024 - p*1024}, v16")
    a("v_lshrrev_b32 v5, 5, v1")
    a("v_and_b32 v6, 31, v1")
    a("s_lshl_b32 s43, s14, 2")
    a("s_lshl_b32 s44, s19, 9")
    for p in range(2):
        a(f"v_add_u32 v7, {2*p}, v5")
        a("v_lshlrev_b32 v16, 2, v7")
        a("v_xor_b32 v16, v16, v6")
        a("v_add_u32 v7, s43, v7")
        a("v_lshlrev_b32 v7, 13, v7")
        a("v_lshl_add_u32 v16, v16, 4, v7")
        a("v_add_u32 v16, s44, v16")
        a(f"v_add_u32 v{VW[p]}, {-p*1024 & 0xffffffff}, v16")
    a("s_lshl_b32 s45, s14, 12")
    a("s_lshl_b32 s46, s14, 11")
    def dma_A(t):
        def f():
            a(f"s_add_u32 m0, s45, {A_SLOT[t%3]}")
            a(f"s_mov_b32 s47, {t*128}")
            for p in range(4):
                a.vmem(f"buffer_load_dwordx4 v{VA[p]}, s[24:27], s47 offen offset:{p*1024} lds", f"A{t}")
        return f
    def dma_W(j):
        def f():
            a(f"s_add_u32 m0, s46, {W_SLOT[j%4]}")
            a(f"s_mov_b32 s48, {j*32*8192}")
            for p in range(2):
                a.vmem(f"buffer_load_dwordx4 v{VW[p]}, s[28:31], s48 offen offset:{p*1024} lds", f"W{j}")
        return f
    dma_A(0)(); dma_W(0)(); dma_W(1)()
    code_pf(a, 'k1_kernel', 14, 2, whole=True)
    late = {0: [dma_A(1)], 1: [dma_W(2), dma_W(3)], 3: [dma_A(2)]}
    RA = [206, 207, 208, 209]; RW = [210, 211]
    a("v_and_b32 v5, 31, v1")
    a("v_lshrrev_b32 v6, 5, v1")
    a("v_bfe_u32 v7, v1, 1, 3")
    a("v_xor_b32 v7, v7, v6")
    a("s_lshr_b32 s49, s14, 2")
    a("s_and_b32 s50, s14, 3")
    a("s_lshl_b32 s51, s49, 14")
    a("v_lshlrev_b32 v5, 7, v5")
    a("v_add_u32 v5, s51, v5")
    for ks in range(4):
        a(f"v_xor_b32 v16, {2*ks}, v7")
        a(f"v_lshl_add_u32 v{RA[ks]}, v16, 4, v5")
    a("v_bfe_u32 v5, v1, 2, 2")
    a("v_lshrrev_b32 v6, 5, v1")
    a("v_lshl_add_u32 v6, v6, 3, v5")
    a("v_lshlrev_b32 v6, 9, v6")
    a("v_bfe_u32 v7, v1, 4, 1")
    a("v_lshl_add_u32 v6, v7, 5, v6")
    a("v_and_b32 v7, 3, v1")
    a("v_lshl_add_u32 v6, v7, 3, v6")
    a("s_lshr_b32 s51, s50, 1")
    a("s_lshl_b32 s51, s51, 8")
    a(f"s_add_u32 s51, s51, {W_SLOT[0]}")
    a("v_add_u32 v6, s51, v6")
    a("s_and_b32 s51, s50, 1")
    a("s_lshl_b32 s51, s51, 1")
    for nb in range(2):
        a(f"s_add_u32 s52, s51, {nb}")
        a("v_xor_b32 v7, s52, v5")
        a(f"v_lshl_add_u32 v{RW[nb]}, v7, 6, v6")
    def ln(a):
        pass
        for i in range(8):
            a(f"v_lshlrev_b32 v{220+2*i}, 16, v{8+i}")
            a(f"v_and_b32 v{221+2*i}, 0xffff0000, v{8+i}")
        a("v_add_f32 v236, v220, v221")
        for i in range(2, 16): a(f"v_add_f32 v236, v236, v{220+i}")
        wave_sum(a, "v236", "v237", 56)
        a(f"v_mul_f32 v236, {1.0/640}, v236")
        a("v_sub_f32 v237, v220, v236")
        a("v_mul_f32 v238, v237, v237")
        for i in range(1, 16):
            a(f"v_sub_f32 v237, v{220+i}, v236")
            a("v_fmac_f32 v238, v237, v237")
        a("v_cndmask_b32 v238, 0, v238, vcc")
        wave_sum(a, "v238", "v237", 56)
        a(f"v_mul_f32 v238, {1.0/640}, v238")
        bf16r(a, "v238", "v238")
        a("v_add_f32 v238, 0x3727c5ac, v238")
        bf16r(a, "v238", "v238")
        a("v_sqrt_f32 v238, v238")
        a("s_nop 0")
        bf16r(a, "v238", "v238")
        a("v_rcp_f32 v238, v238")
        bf16r(a, "v236", "v236")
        for i in range(0, 16, 2):
            a(f"v_sub_f32 v{220+i}, v{220+i}, v236")
            a(f"v_sub_f32 v{221+i}, v{221+i}, v236")
            a(f"v_cvt_pk_bf16_f32 v237, v{220+i}, v{221+i}")
            a(f"v_lshlrev_b32 v{220+i}, 16, v237")
            a(f"v_and_b32 v{221+i}, 0xffff0000, v237")
            a(f"v_mul_f32 v{220+i}, v{220+i}, v238")
            a(f"v_mul_f32 v{221+i}, v{221+i}, v238")
            a(f"v_cvt_pk_bf16_f32 v{8+i//2}, v{220+i}, v{221+i}")
        a("s_lshr_b32 s41, s40, 5")
        a("s_mul_i32 s41, s41, 40960")
        a("s_and_b32 s42, s40, 31")
        a("s_lshl_b32 s42, s42, 4")
        a("s_add_u32 s41, s41, s42")
        a("v_lshlrev_b32 v3, 10, v1")
        a("v_add_u32 v3, s41, v3")
        a("v_cndmask_b32 v3, v4, v3, vcc")
        a("buffer_store_dwordx4 v[8:11], v3, s[32:35], 0 offen")
        a("buffer_store_dwordx4 v[12:15], v3, s[32:35], 0 offen offset:512")
    la = Asm(); ln(la)
    lnops = [l.strip() for l in la.lines]
    a.stamp("1"); nst0 = getattr(a, "nst", 0)
    a("v_lshlrev_b32 v212, 4, v1")
    a("s_cmp_lt_u32 s18, 16")
    a("s_cbranch_scc0 K1_V")
    vm_save = list(a.vm)
    for typ in range(2):
        a.vm = list(vm_save); a.nst = nst0
        if typ == 1: a.label("K1_V")
        ACC = lambda mb, nb: 64 + (mb*2+nb)*16
        FA = lambda buf, mb: 16 + buf*24 + mb*4
        FW = lambda buf, nb: 16 + buf*24 + 16 + nb*4
        RA2 = [213, 214, 215, 216]
        for ks in range(4):
            a(f"v_add_u32 v{RA2[ks]}, 0x10000, v{RA[ks]}")
        NS = 32
        SK = int(OPT.get("k1_skew", 8))
        steps = [(n, (0, 1, 2, 3)) for n in range(NS - SK)] + [(n, (0, 1)) for n in range(NS - SK, NS)] + [(n, (2, 3)) for n in range(NS - SK, NS)]
        def reads(i):
            n, mbs = steps[i]
            t, ks = n // 4, n % 4
            j, k2 = n // 2, n % 2
            buf = i % 2
            r = []
            for nb in range(2):
                for r2 in range(2):
                    off = W_SLOT[j % 4] - W_SLOT[0] + (16*k2 + 4*r2)*512
                    r.append(f"ds_read_b64_tr_b16 {vr(FW(buf, nb)+2*r2, 2)}, v{RW[nb]} offset:{off}")
            for mb in mbs:
                if t % 3 == 2: r.append(f"ds_read_b128 {vr(FA(buf, mb), 4)}, v{RA2[ks]} offset:{mb*4096}")
                else: r.append(f"ds_read_b128 {vr(FA(buf, mb), 4)}, v{RA[ks]} offset:{A_SLOT[t % 3] + mb*4096}")
            return r
        def mfmas(i):
            n, mbs = steps[i]
            buf = i % 2
            m = []
            for mb in mbs:
                for nb in range(2):
                    c = vr(ACC(mb, nb), 16)
                    cin = "0" if n == 0 else c
                    fa, fw = vr(FA(buf, mb), 4), vr(FW(buf, nb), 4)
                    if typ == 0: m.append(f"v_mfma_f32_32x32x16_bf16 {c}, {fw}, {fa}, {cin}")
                    else:        m.append(f"v_mfma_f32_32x32x16_bf16 {c}, {fa}, {fw}, {cin}")
            return m
        a("s_lshl_b32 s53, s19, 1")
        a("s_lshr_b32 s54, s50, 1")
        a("s_add_u32 s53, s53, s54")
        a("s_lshl_b32 s53, s53, 19")
        a("s_lshl_b32 s54, s17, 16")
        a("s_add_u32 s53, s53, s54")
        a("s_lshl_b32 s54, s49, 15")
        a("s_add_u32 s53, s53, s54")
        a("s_and_b32 s54, s50, 1")
        a(f"s_lshl_b32 s54, s54, {12 if typ == 0 else 11}")
        a("s_add_u32 s53, s53, s54")
        a(f"s_mov_b32 s65, {hexf(CSCALE)}")
        def unit(mb, nb, t, d):
            src = ACC(mb, nb) + 8*t
            o = []
            for i in range(4):
                if typ == 0:
                    o.append(f"v_mul_f32 v{src+2*i}, s65, v{src+2*i}")
                    o.append(f"v_mul_f32 v{src+2*i+1}, s65, v{src+2*i+1}")
                o.append(f"v_cvt_pk_bf16_f32 v{d+i}, v{src+2*i}, v{src+2*i+1}")
            if typ == 0: off = (mb >> 1)*16384 + (mb & 1)*8192 + (2*nb + t)*1024
            else:        off = (mb >> 1)*16384 + (2*(mb & 1) + t)*4096 + nb*1024
            o.append(f"s_add_u32 s55, s53, {off}")
            if not OPT.get("k1_nostore"): o.append(f"buffer_store_dwordx4 {vr(d, 4)}, v212, s[36:39], s55 offen {(OPT.get('k1_st', 'sc1') if mb < 2 else OPT.get('k1_st2', OPT.get('k1_st', 'sc1'))).replace('_', ' ')}")
            return o
        units = [(mb, nb, t) for mb in range(4) for nb in range(2) for t in range(2)]
        early = units[:8] if SK else []
        UPS = -(-8 // max(1, SK)) * int(OPT.get("k1_ups", 2))
        ne = 0
        lno = list(lnops)
        NT = len(steps)
        for i in range(NT + 1):
            fill = []
            n = steps[i][0] if i < NS else None
            if i < NS and n % 2 == 0:
                j = n // 2; t = j // 2
                a.wait_vm([f"A{t}", f"W{j}"], "lgkmcnt(0)")
                a("s_barrier")
                if n % 4 == 0: a.stamp("1")
                fill += reads(i)
                if j >= 1 and j + 3 < 16: fill.append(dma_W(j + 3))
                if j % 2 == 0 and t >= 1 and t + 2 < 8: fill.append(dma_A(t + 2))
            else:
                a("s_waitcnt lgkmcnt(0)")
                if i < NT: fill += reads(i)
            fill += late.get(i, [])
            if i in (25, 26, 27) and not OPT.get("nopf"):
                fill.append((lambda q: lambda: a.vmem(f"buffer_load_dwordx4 {vr(240 + 4*q, 4)}, v212, s[60:63], s64 offen offset:{q*1024}", "pf"))(i - 25))
            if i >= 6:
                cnt = 8 if SK else 7
                for x in lno[:cnt]:
                    if x.startswith("buffer_store"): fill.append((lambda x: lambda: a.vmem(x, "xs"))(x))
                    else: fill.append(x)
                lno = lno[cnt:]
            pg = 2
            if i > NS:
                for _ in range(UPS):
                    if early:
                        fill += unit(*early.pop(0), (192, 196, 252)[ne % 3]); ne += 1
                pg = -(-len(fill) // 4)
            if i == 0:
                for f in fill: f() if callable(f) else a(f)
            else:
                interleave(a, mfmas(i - 1)[:1 if OPT.get("k1_nomfma") else 8], fill, per_gap=pg)
        assert not lno and not early
        a.stamp("1")
        a("s_nop 7"); a("s_nop 7")
        for k, u in enumerate(units[8:] if SK else units):
            for x in unit(*u, 16 + (k % 8)*4): a(x)
        a.stamp_out("1", 12, 14)
        a("s_endpgm")
    a.label("K1_END")
    a("s_endpgm")
    return a.text()
```

```python
from common import *
K3_LDS = 160*1024
PART_SPLIT = 64*40*1024
NSPLIT = 4
def gen_k3(fuse=False):
    a = Asm()
    a("s_cmp_ge_u32 s2, 256")
    a("s_cbranch_scc1 K3_END")
    a.stamp("3")
    a(f"s_load_dwordx2 s[4:5], s[0:1], {KA_WO}")
    a(f"s_load_dwordx2 s[6:7], s[0:1], {KA_WS}")
    claim(a, 1, 256)
    L, T0, T1, T2, LN16 = 248, 249, 250, 251, 252
    RD = [253, 254, 255, T2]
    VD = [123+i for i in range(5)]
    a(f"v_and_b32 v{L}, 63, v0")
    a(f"v_lshrrev_b32 v{T0}, 6, v0")
    a("s_nop 0")
    a(f"v_readfirstlane_b32 s14, v{T0}")
    a("s_and_b32 s15, s2, 3")
    a("s_bfe_u32 s16, s2, 0x20003")
    a("s_lshr_b32 s17, s2, 5")
    a("s_bfe_u32 s18, s2, 0x10002")
    a("s_lshl_b32 s18, s18, 3")
    a("s_add_u32 s17, s17, s18")
    a("s_and_b32 s51, s14, 3")
    a("s_lshr_b32 s52, s14, 2")
    a("s_lshl_b32 s18, s17, 2")
    a("s_add_u32 s18, s18, s51")
    a(f"v_lshlrev_b32 v{LN16}, 4, v{L}")
    a("s_mul_i32 s19, s16, 320")
    a("s_mul_i32 s40, s51, 16*1280")
    a("s_add_u32 s19, s19, s40")
    a("s_movk_i32 s41, 3277")
    a("s_movk_i32 s42, 1280")
    for p in range(5):
        a(f"v_add_u32 v{T0}, {64*p}, v{L}")
        a(f"v_mul_u32_u24 v{T1}, s41, v{T0}")
        a(f"v_lshrrev_b32 v{T1}, 16, v{T1}")
        a(f"v_mul_u32_u24 v{T2}, 20, v{T1}")
        a(f"v_sub_u32 v{T0}, v{T0}, v{T2}")
        a(f"v_mul_u32_u24 v{T1}, s42, v{T1}")
        a(f"v_lshl_add_u32 v{T0}, v{T0}, 4, v{T1}")
        a(f"v_add_u32 v{T0}, s19, v{T0}")
        a(f"v_add_u32 v{VD[p]}, {(-(p % 4)*1024) & 0xffffffff}, v{T0}")
    a("s_mul_i32 s43, s14, 5120")
    a("s_lshl_b32 s53, s15, 1")
    a("s_add_u32 s53, s53, s52")
    a("s_mul_i32 s44, s53, 512*1280")
    a("s_lshl_b32 s45, s18, 18")
    a("s_lshl_b32 s46, s53, 15")
    a("s_add_u32 s45, s45, s46")
    a("s_waitcnt lgkmcnt(0)")
    a.srd(20, 4, 5, 4096*640*2)
    a.srd(24, 6, 7, 16*MB, add=WS_CTX)
    a.srd(28, 6, 7, NSPLIT*PART_SPLIT, add=WS_PART)
    if fuse: a.srd(60, 6, 7, FLAG_SZ, add=WS_FLAG)
    def dma_W(g):
        def f():
            a(f"s_add_u32 m0, s43, {(g % 4)*40960}")
            a(f"s_add_u32 s47, s44, {g*64*1280}")
            for p in range(4):
                a.vmem(f"buffer_load_dwordx4 v{VD[p]}, s[20:23], s47 offen offset:{p*1024} lds", f"W{g}")
            a(f"s_add_u32 m0, s43, {(g % 4)*40960 + 4096}")
            a("s_nop 0")
            a.vmem(f"buffer_load_dwordx4 v{VD[4]}, s[20:23], s47 offen lds", f"W{g}")
        return f
    def ld_x(n):
        def f():
            a(f"s_add_u32 s48, s45, {n*1024}")
            a.vmem(f"buffer_load_dwordx4 {vr(4*n, 4)}, v{LN16}, s[24:27], s48 offen", f"X{n}")
        return f
    dma_W(0)()
    for n in range(4): ld_x(n)()
    dma_W(1)()
    SC = int(OPT.get("k3_sc", 0))
    if SC == 0:
        late = {0: [ld_x(4), ld_x(5), ld_x(6), ld_x(7)], 1: [dma_W(2)], 2: [ld_x(8), ld_x(9), ld_x(10), ld_x(11)], 3: [dma_W(3)]}
        for g in range(4, 8):
            n0 = 4*(g - 3)
            late[n0] = [ld_x(n0 + 8), ld_x(n0 + 9)]; late[n0 + 1] = [ld_x(n0 + 10), ld_x(n0 + 11)]; late[n0 + 2] = [dma_W(g)]
        late[19] = [ld_x(28), ld_x(29)]; late[20] = [ld_x(30), ld_x(31)]
    else:
        for n in range(4, 8): ld_x(n)()
        dma_W(2)()
        if SC == 2:
            for n in range(8, 12): ld_x(n)()
            dma_W(3)()
            late = {0: [ld_x(12), ld_x(13)], 1: [ld_x(14), ld_x(15)]}
        else: late = {0: [ld_x(8), ld_x(9), ld_x(10), ld_x(11)], 1: [dma_W(3)], 2: [ld_x(12), ld_x(13)], 3: [ld_x(14), ld_x(15)]}
        for g in range(4, 8):
            n0 = 4*(g - 3)
            late[n0] = [dma_W(g)]
            if g < 7: late[n0 + 1] = [ld_x(n0 + 12), ld_x(n0 + 13)]; late[n0 + 2] = [ld_x(n0 + 14), ld_x(n0 + 15)]
        late[17] = [ld_x(28), ld_x(29)]; late[18] = [ld_x(30), ld_x(31)]
    a.stamp("3")
    a(f"v_bfe_u32 v{T0}, v{L}, 2, 2")
    a(f"v_lshrrev_b32 v{T1}, 5, v{L}")
    a(f"v_lshl_add_u32 v{T0}, v{T1}, 2, v{T0}")
    a(f"v_mul_u32_u24 v{T0}, 320, v{T0}")
    a(f"v_bfe_u32 v{T1}, v{L}, 4, 1")
    a(f"v_lshl_add_u32 v{T0}, v{T1}, 5, v{T0}")
    a(f"v_and_b32 v{T1}, 3, v{L}")
    a(f"v_lshl_add_u32 v{RD[0]}, v{T1}, 3, v{T0}")
    a("s_mul_i32 s54, s52, 20480")
    a(f"v_add_u32 v{RD[0]}, s54, v{RD[0]}")
    for st in range(1, 4): a(f"v_add_u32 v{RD[st]}, {st*40960}, v{RD[0]}")
    ACC = lambda mb: 128 + 16*mb
    FW = lambda buf, mb: 208 + (buf*5 + mb)*4
    def reads(n):
        g, k = n // 4, n % 4
        return [f"ds_read_b64_tr_b16 {vr(FW(n % 2, mb) + 2*r2, 2)}, v{RD[g % 4]} offset:{(16*k + 8*r2)*320 + 64*mb}"
                for mb in range(5) for r2 in range(2)]
    def mf(n):
        return [f"v_mfma_f32_32x32x16_bf16 {vr(ACC(mb), 16)}, {vr(FW(n % 2, mb), 4)}, {vr(4*n, 4)}, {'0' if n == 0 else vr(ACC(mb), 16)}"
                for mb in range(5)]
    for n in range(33):
        tags = [f"X{n-1}"] if n else []
        fill = []
        if n < 32 and n % 4 == 0:
            a.wait_vm(tags + [f"W{n//4}"], "lgkmcnt(0)")
            a("s_barrier")
            if n % 8 == 0: a.stamp("3")
        else:
            a.wait_vm(tags, "lgkmcnt(0)")
        if n < 32: fill = reads(n)
        fill += late.get(n, [])
        if n == 0:
            for f in fill: f() if callable(f) else a(f)
        else: interleave(a, mf(n - 1), fill, per_gap=3)
    a.stamp("3")
    a("s_mul_i32 s54, s14, 10240")
    a(f"v_add_u32 v{T0}, s54, v{LN16}")
    a("s_xor_b32 s55, s14, 4")
    a("s_mul_i32 s55, s55, 10240")
    a(f"v_add_u32 v{T1}, s55, v{LN16}")
    a(f"s_mul_i32 s49, s15, {PART_SPLIT}")
    a("s_mul_i32 s50, s18, 40960")
    a("s_add_u32 s49, s49, s50")
    a("s_mul_i32 s50, s16, 10240")
    a("s_add_u32 s49, s49, s50")
    a("s_mul_i32 s50, s52, 5120")
    a("s_add_u32 s49, s49, s50")
    a("s_add_u32 s50, s49, 4096")
    a("s_cmp_eq_u32 s52, 0")
    a("s_cbranch_scc0 K3_KH1")
    for kh in range(2):
        if kh: a.label("K3_KH1")
        mine = 128 + 40*kh; other = 128 + 40*(1 - kh)
        for i in range(10): a(f"ds_write_b128 v{T0}, {vr(other + 4*i, 4)} offset:{1024*i}")
        a("s_waitcnt lgkmcnt(0)")
        a("s_barrier")
        for i in range(10): a(f"ds_read_b128 {vr(4*i, 4)}, v{T1} offset:{1024*i}")
        for hb in range(5):
            a(f"s_waitcnt lgkmcnt({8 - 2*hb})")
            for i in range(8): a(f"v_add_f32 v{mine + 8*hb + i}, v{mine + 8*hb + i}, v{8*hb + i}")
            for i in range(4): a(f"v_cvt_pk_bf16_f32 v{64 + 4*hb + i}, v{mine + 8*hb + 2*i}, v{mine + 8*hb + 2*i + 1}")
            a(f"buffer_store_dwordx4 {vr(64 + 4*hb, 4)}, v{LN16}, s[28:31], s{49 if hb < 4 else 50} offen offset:{(hb % 4)*1024} {OPT.get('k3_st', 'sc1')}")
        if fuse:
            if kh == 0: a("s_branch K3_FIN")
            continue
        nst = getattr(a, "nst", 0)
        a.stamp_out("3", 6, 14)
        a.nst = nst
        a("s_endpgm")
    if fuse:
        a.label("K3_FIN")
        a("s_lshl_b32 s57, s17, 4")
        a("s_lshl_b32 s58, s15, 2")
        a("s_add_u32 s58, s58, s16")
        a("s_add_u32 s2, s57, s58")
        a("s_lshl_b32 s58, s2, 2")
        a(f"s_add_u32 s58, s58, {FL_PART}")
        a("s_lshl_b32 s57, s57, 2")
        a(f"s_add_u32 s57, s57, {FL_PART}")
        a("s_mov_b32 s56, s14")
        a.stamp("3")
        signal(a, 60, 56, 0, 1, "s58")
        a.stamp("3")
        a("s_cmp_ge_u32 s56, 5")
        a("s_cbranch_scc1 K3_END")
        a("s_lshl_b32 s55, s56, 6")
        a(f"v_add_u32 v0, s55, v{L}")
        gen_k4(a, L)
    a.label("K3_END")
    a("s_endpgm")
    return a.text()

K4_LDS = 16*1024
def gen_k4(fa=None, L=None):
    a = fa or Asm()
    a.vm = []
    if not fa:
        a("s_cmp_ge_u32 s2, 256")
        a("s_cbranch_scc1 K4_END")
    a(f"s_load_dwordx2 s[4:5], s[0:1], {KA_X}")
    a(f"s_load_dwordx2 s[6:7], s[0:1], {KA_WS}")
    a("v_and_b32 v1, 7, v0")
    a("v_lshrrev_b32 v2, 3, v0")
    a("s_lshl_b32 s14, s2, 3")
    a("v_add_u32 v3, s14, v1")
    a("s_lshr_b32 s15, s2, 2")
    a("s_mul_i32 s16, s15, 40960")
    a("v_and_b32 v4, 31, v3")
    a("v_lshlrev_b32 v4, 4, v4")
    a("v_lshl_add_u32 v4, v2, 10, v4")
    a("v_add_u32 v4, s16, v4")
    a("s_movk_i32 s17, 1280")
    a("v_mul_u32_u24 v5, s17, v3")
    a("v_lshl_add_u32 v5, v2, 5, v5")
    a("s_waitcnt lgkmcnt(0)")
    a.srd(20, 4, 5, SZ_X)
    a.srd(24, 6, 7, NSPLIT*PART_SPLIT, add=WS_PART)
    a.srd(28, 6, 7, SZ_X, add=WS_H)
    a.srd(32, 6, 7, SZ_X, add=WS_HN)
    def ldx():
        a.vmem("buffer_load_dwordx4 v[96:99], v5, s[20:23], 0 offen", "x")
        a.vmem("buffer_load_dwordx4 v[100:103], v5, s[20:23], 0 offen offset:16", "x")
    if fa:
        ldx()
        wait_flags(a, 60, 56, L, 8, 9, 59, "s57", 16)
        a.stamp("3")
    for sp in range(NSPLIT):
        a(f"s_mov_b32 s18, {sp*PART_SPLIT}")
        a.vmem(f"buffer_load_dwordx4 {vr(32 + 8*sp, 4)}, v4, s[24:27], s18 offen", f"P{sp}")
        a.vmem(f"buffer_load_dwordx4 {vr(36 + 8*sp, 4)}, v4, s[24:27], s18 offen offset:512", f"P{sp}")
    if not fa: ldx()
    a("v_mul_u32_u24 v6, 80, v1")
    a("v_lshrrev_b32 v7, 4, v0")
    a("v_lshl_add_u32 v7, v7, 2, v6")
    src = [0, 1, 4, 5, 2, 3, 6, 7]
    V = lambda i: 16 + i
    for sp in range(NSPLIT):
        a.wait_vm([f"P{sp}"])
        for j in range(8):
            r = 32 + 8*sp + src[j]
            if sp == 0:
                a(f"v_lshlrev_b32 v{V(2*j)}, 16, v{r}")
                a(f"v_and_b32 v{V(2*j+1)}, 0xffff0000, v{r}")
            else:
                a(f"v_lshlrev_b32 v8, 16, v{r}")
                a(f"v_and_b32 v9, 0xffff0000, v{r}")
                a(f"v_add_f32 v{V(2*j)}, v{V(2*j)}, v8")
                a(f"v_add_f32 v{V(2*j+1)}, v{V(2*j+1)}, v9")
    a.wait_vm(["x"])
    for j in range(8):
        a(f"v_cvt_pk_bf16_f32 v8, v{V(2*j)}, v{V(2*j+1)}")
        a(f"v_lshlrev_b32 v{V(2*j)}, 16, v8")
        a(f"v_and_b32 v{V(2*j+1)}, 0xffff0000, v8")
        a(f"v_lshlrev_b32 v8, 16, v{96+j}")
        a(f"v_and_b32 v9, 0xffff0000, v{96+j}")
        a(f"v_add_f32 v{V(2*j)}, v{V(2*j)}, v8")
        a(f"v_add_f32 v{V(2*j+1)}, v{V(2*j+1)}, v9")
        a(f"v_cvt_pk_bf16_f32 v{32+j}, v{V(2*j)}, v{V(2*j+1)}")
        a(f"v_lshlrev_b32 v{V(2*j)}, 16, v{32+j}")
        a(f"v_and_b32 v{V(2*j+1)}, 0xffff0000, v{32+j}")
    a("buffer_store_dwordx4 v[32:35], v5, s[28:31], 0 offen" + " " + OPT.get("k4_st", ""))
    a("buffer_store_dwordx4 v[36:39], v5, s[28:31], 0 offen offset:16" + " " + OPT.get("k4_st", ""))
    red = [0]
    def row_sum(v):
        base = 12288 + red[0]*1024; red[0] += 1
        a("s_nop 1")
        a(f"v_add_f32_dpp {v}, {v}, {v} row_ror:8 row_mask:0xf bank_mask:0xf")
        a(f"ds_write_b32 v7, {v} offset:{base}")
        a("s_waitcnt lgkmcnt(0)")
        a("s_barrier")
        for i in range(5): a(f"ds_read_b128 {vr(40 + 4*i, 4)}, v6 offset:{base + 16*i}")
        a("s_waitcnt lgkmcnt(0)")
        a(f"v_add_f32 {v}, v40, v41")
        for i in range(2, 20): a(f"v_add_f32 {v}, {v}, v{40+i}")
        a(f"v_mul_f32 {v}, {1.0/640}, {v}")
    for ln in range(2):
        a(f"v_add_f32 v10, v{V(0)}, v{V(1)}")
        for i in range(2, 16): a(f"v_add_f32 v10, v10, v{V(i)}")
        row_sum("v10")
        a(f"v_sub_f32 v8, v{V(0)}, v10")
        a("v_mul_f32 v11, v8, v8")
        for i in range(1, 16):
            a(f"v_sub_f32 v8, v{V(i)}, v10")
            a("v_fmac_f32 v11, v8, v8")
        row_sum("v11")
        bf16r(a, "v11", "v11")
        a("v_add_f32 v11, 0x3727c5ac, v11")
        bf16r(a, "v11", "v11")
        a("v_sqrt_f32 v11, v11")
        a("s_nop 0")
        bf16r(a, "v11", "v11")
        a("v_rcp_f32 v11, v11")
        bf16r(a, "v10", "v10")
        for j in range(8):
            x0, x1 = V(2*j), V(2*j+1)
            a(f"v_sub_f32 v{x0}, v{x0}, v10")
            a(f"v_sub_f32 v{x1}, v{x1}, v10")
            a(f"v_cvt_pk_bf16_f32 v8, v{x0}, v{x1}")
            a(f"v_lshlrev_b32 v{x0}, 16, v8")
            a(f"v_and_b32 v{x1}, 0xffff0000, v8")
            a(f"v_mul_f32 v{x0}, v{x0}, v11")
            a(f"v_mul_f32 v{x1}, v{x1}, v11")
            a(f"v_cvt_pk_bf16_f32 v{64+j}, v{x0}, v{x1}")
            if ln == 0:
                a(f"v_lshlrev_b32 v{x0}, 16, v{64+j}")
                a(f"v_and_b32 v{x1}, 0xffff0000, v{64+j}")
    a("s_movk_i32 s17, 272")
    a("v_mul_u32_u24 v8, s17, v2")
    a("v_lshl_add_u32 v8, v1, 1, v8")
    for j in range(8):
        a(f"ds_write_b16 v8, v{64+j} offset:{32*j}")
        a(f"ds_write_b16_d16_hi v8, v{64+j} offset:{32*j+16}")
    a("v_lshrrev_b32 v9, 4, v0")
    a("v_add_u32 v10, v9, v0")
    a("v_lshlrev_b32 v10, 4, v10")
    a("v_and_b32 v11, 15, v0")
    a("v_lshlrev_b32 v11, 4, v11")
    a("v_lshl_add_u32 v11, v9, 16, v11")
    a("s_lshl_b32 s18, s15, 10")
    a("s_and_b32 s19, s2, 3")
    a("s_lshl_b32 s19, s19, 8")
    a("s_add_u32 s18, s18, s19")
    a("s_waitcnt lgkmcnt(0)")
    a("s_barrier")
    a("ds_read_b128 v[40:43], v10")
    a(f"ds_read_b128 v[44:47], v10 offset:{340*16}")
    a(f"s_add_u32 s19, s18, {20*65536}")
    a("s_waitcnt lgkmcnt(1)")
    a("buffer_store_dwordx4 v[40:43], v11, s[32:35], s18 offen" + " " + OPT.get("k4_st", ""))
    a("s_waitcnt lgkmcnt(0)")
    a("buffer_store_dwordx4 v[44:47], v11, s[32:35], s19 offen" + " " + OPT.get("k4_st", ""))
    if fa:
        a.stamp_out("3", 6, 56)
        return
    a.label("K4_END")
    a("s_endpgm")
    return a.text()
```

```python
NAME = "sequential_preLN__compressed_kv_cla__mixer_token_mlp__prompt"
KA_X, KA_CKV, KA_WQ, KA_WUK, KA_WUV, KA_WO, KA_BX, KA_W1, KA_B1, KA_W2, KA_B2, KA_OUT, KA_DBG, KA_WS = [8*i for i in range(14)]
MB = 1 << 20
OPT = {}
WS_XN   = 0
WS_KT   = 4*MB
WS_VT   = 20*MB
WS_CTX  = 36*MB
WS_PART = 52*MB
WS_H    = 96*MB
WS_HN   = 100*MB
WS_U    = 104*MB
SZ_X = 2048*640*2
WS_FLAG = 110*MB
FL_U, FL_HN, FL_PART, FL_CTX = 0, 1024, 2048, 3072
FL_CNT = 4096
FLAG_SZ = 4096 + 16384

class Asm:
    def __init__(self):
        self.lines = []
        self.vm = []
    def __call__(self, s):
        self.lines.append("    " + s)
    def label(self, l):
        self.lines.append(l + ":")
    def comment(self, s):
        self.lines.append("    ; " + s)
    def vmem(self, s, tag):
        self(s); self.vm.append(tag)
    def vm_count_for(self, tags):
        last = -1
        for i, t in enumerate(self.vm):
            if t in tags: last = i
        n = len(self.vm) - 1 - last
        self.vm = self.vm[last+1:]
        return n if last >= 0 else None
    def wait_vm(self, tags, extra=""):
        n = self.vm_count_for(tags)
        if n is None:
            if extra: self("s_waitcnt " + extra)
            return
        assert n <= 63
        self(("s_waitcnt vmcnt(%d) " % n + extra).strip())
    def srd(self, d, lo, hi, size, add=0):
        if add:
            self(f"s_add_u32 s{d}, s{lo}, {add}")
            self(f"s_addc_u32 s{d+1}, s{hi}, 0")
            self(f"s_and_b32 s{d+1}, s{d+1}, 0xffff")
        else:
            self(f"s_mov_b32 s{d}, s{lo}")
            self(f"s_and_b32 s{d+1}, s{hi}, 0xffff")
        self(f"s_mov_b32 s{d+2}, {size}")
        self(f"s_mov_b32 s{d+3}, 0x00020000")
    def stamp(self, k):
        if k in str(OPT.get("stamp", "")):
            i = getattr(self, "nst", 0); self.nst = i + 1
            self(f"{OPT.get('rt', 's_memtime')} s[{70+2*i}:{71+2*i}]")
    def stamp_out(self, k, wslo, wave):
        if k in str(OPT.get("stamp", "")):
            self("s_waitcnt vmcnt(0) lgkmcnt(0)")
            self.stamp(k)
            self("s_waitcnt lgkmcnt(0)")
            self.srd(64, wslo, wslo+1, 1*MB, add=120*MB + 131072*str(OPT['stamp']).index(k))
            self(f"s_lshl_b32 s68, s2, 3"); self(f"s_add_u32 s68, s68, s{wave}"); self("s_lshl_b32 s68, s68, 6")
            self("v_mov_b32 v0, 0")
            for i in range(self.nst):
                self(f"v_mov_b32 v1, s{70+2*i}")
                self(f"buffer_store_dword v1, v0, s[64:67], s68 offen offset:{4*i}")
    def text(self):
        return "\n".join(self.lines) + "\n"

def kernel_header(name):
    return f".globl {name}\n.p2align 8\n.type {name},@function\n{name}:\n"

def kernel_desc(name, vgpr, sgpr=102, accum=None):
    if accum is None: accum = (vgpr + 3)//4*4
    return f""".p2align 6
.amdhsa_kernel {name}
  .amdhsa_next_free_vgpr {vgpr}
  .amdhsa_next_free_sgpr {sgpr}
  .amdhsa_accum_offset {accum}
  .amdhsa_group_segment_fixed_size 0
  .amdhsa_kernarg_size 112
  .amdhsa_user_sgpr_count 2
  .amdhsa_user_sgpr_kernarg_segment_ptr 1
  .amdhsa_system_sgpr_workgroup_id_x 1
  .amdhsa_float_denorm_mode_32 3
.end_amdhsa_kernel
"""

def vr(b, n): return f"v[{b}:{b+n-1}]"

def interleave(a, mfmas, fillers, first_gap=0, per_gap=None):
    nf = len(fillers); nm = len(mfmas)
    if per_gap is None:
        per_gap = -(-nf // max(1, nm - first_gap))
    fi = 0
    for i, m in enumerate(mfmas):
        a(m)
        if i >= first_gap:
            for _ in range(per_gap):
                if fi < nf:
                    f = fillers[fi]; fi += 1
                    f() if callable(f) else a(f)
    while fi < nf:
        f = fillers[fi]; fi += 1
        f() if callable(f) else a(f)

def wave_sum(a, v, tmp, s0):
    a("s_nop 1")
    a(f"v_add_f32_dpp {v}, {v}, {v} quad_perm:[1,0,3,2] row_mask:0xf bank_mask:0xf")
    a("s_nop 1")
    a(f"v_add_f32_dpp {v}, {v}, {v} quad_perm:[2,3,0,1] row_mask:0xf bank_mask:0xf")
    a("s_nop 1")
    a(f"v_add_f32_dpp {v}, {v}, {v} row_half_mirror row_mask:0xf bank_mask:0xf")
    a("s_nop 1")
    a(f"v_add_f32_dpp {v}, {v}, {v} row_mirror row_mask:0xf bank_mask:0xf")
    a("s_nop 1")
    for i in range(4):
        a(f"v_readlane_b32 s{s0+i}, {v}, {16*i}")
    a("s_nop 1")
    a(f"v_mov_b32 {v}, s{s0}")
    for i in range(1, 4):
        a(f"v_add_f32 {v}, s{s0+i}, {v}")

def bf16r(a, dst, src, tmp=None):
    a(f"v_cvt_pk_bf16_f32 {dst}, {src}, {src}")
    a(f"v_and_b32 {dst}, 0xffff0000, {dst}")

_wf = [0]
def wait_flags(a, srd, wave, lane, vt, vf, scnt, soff, n, w4=False):
    _wf[0] += 1; i = _wf[0]
    a(f"s_cmp_lg_u32 s{wave}, 0")
    a(f"s_cbranch_scc1 WF_SKIP{i}")
    a(f"v_lshlrev_b32 v{vt}, {4 if w4 else 2}, v{lane}")
    if n < 64: a(f"s_mov_b64 exec, {(1 << n) - 1}")
    a(f"s_mov_b32 s{scnt}, 0x40000")
    a.label(f"WF_LOOP{i}")
    if w4: a(f"buffer_load_dwordx4 v[{vf}:{vf+3}], v{vt}, s[{srd}:{srd+3}], {soff} offen sc1")
    else: a(f"buffer_load_dword v{vf}, v{vt}, s[{srd}:{srd+3}], {soff} offen sc1")
    a("s_waitcnt vmcnt(0)")
    if w4:
        a(f"v_min_u32 v{vf}, v{vf}, v{vf+1}")
        a(f"v_min3_u32 v{vf}, v{vf}, v{vf+2}, v{vf+3}")
    a(f"v_cmp_eq_u32 vcc, 0, v{vf}")
    a("s_cmp_eq_u64 vcc, 0")
    a(f"s_cbranch_scc1 WF_DONE{i}")
    a(f"s_sleep {OPT.get('slp', 4)}")
    a(f"s_sub_u32 s{scnt}, s{scnt}, 1")
    a(f"s_cbranch_scc0 WF_LOOP{i}")
    a.label(f"WF_DONE{i}")
    if n < 64: a("s_mov_b64 exec, -1")
    a.label(f"WF_SKIP{i}")
    a("s_barrier")

def signal(a, srd, wave, v0, v1, soff):
    _wf[0] += 1; i = _wf[0]
    a(f"v_mov_b32 v{v0}, 1")
    a(f"v_mov_b32 v{v1}, 0")
    a("s_waitcnt vmcnt(0)")
    a("s_barrier")
    a(f"s_cmp_lg_u32 s{wave}, 0")
    a(f"s_cbranch_scc1 SG_SKIP{i}")
    a("s_mov_b64 exec, 1")
    a(f"buffer_store_dword v{v0}, v{v1}, s[{srd}:{srd+3}], {soff} offen sc1")
    a("s_mov_b64 exec, -1")
    a.label(f"SG_SKIP{i}")

def claim(a, k, whole):
    if not OPT.get("claim"): return
    P = f"CL{k}"
    a(f"s_load_dwordx2 s[88:89], s[0:1], {KA_WS}")
    a("s_getreg_b32 s90, hwreg(HW_REG_XCC_ID, 0, 4)")
    a("v_readfirstlane_b32 s91, v0")
    if whole < 256:
        a(f"s_cmp_ge_u32 s2, {whole}")
        a(f"s_cbranch_scc1 {P}_END")
    a("v_mov_b32 v2, 0")
    a("s_cmp_lg_u32 s91, 0")
    a(f"s_cbranch_scc1 {P}_WAIT")
    a("s_lshr_b32 s91, s2, 6")
    a("s_lshl_b32 s91, s91, 10")
    a(f"s_add_u32 s91, s91, {FL_CNT + k*4096}")
    a("s_mov_b64 exec, 1")
    a("s_waitcnt lgkmcnt(0)")
    a.srd(92, 88, 89, FLAG_SZ, add=WS_FLAG)
    a("s_mov_b32 s88, 8")
    a.label(f"{P}_TRY")
    a("s_and_b32 s90, s90, 7")
    a("s_lshl_b32 s89, s90, 7")
    a("s_add_u32 s89, s89, s91")
    a("v_mov_b32 v1, 1")
    a("buffer_atomic_add v1, v2, s[92:95], s89 offen sc0 sc1")
    a("s_waitcnt vmcnt(0)")
    a("v_readfirstlane_b32 s89, v1")
    a("s_cmp_lt_u32 s89, 8")
    a(f"s_cbranch_scc1 {P}_GOT")
    a("s_add_u32 s90, s90, 1")
    a("s_sub_u32 s88, s88, 1")
    a("s_cmp_lg_u32 s88, 0")
    a(f"s_cbranch_scc1 {P}_TRY")
    a.label(f"{P}_GOT")
    a("s_and_b32 s89, s89, 7")
    a("s_and_b32 s90, s90, 7")
    a("s_lshl_b32 s89, s89, 3")
    a("s_or_b32 s89, s89, s90")
    a("v_mov_b32 v1, s89")
    a("ds_write_b32 v2, v1")
    a("s_mov_b64 exec, -1")
    a("s_waitcnt lgkmcnt(0)")
    a.label(f"{P}_WAIT")
    a("s_barrier")
    a("ds_read_b32 v1, v2")
    a("s_andn2_b32 s2, s2, 63")
    a("s_waitcnt lgkmcnt(0)")
    a("v_readfirstlane_b32 s89, v1")
    a("s_barrier")
    a("s_or_b32 s2, s2, s89")
    a.label(f"{P}_END")

def code_pf(a, kname, wave, rounds, whole=False):
    if not OPT.get("cpf"): return
    a("s_getpc_b64 s[88:89]")
    a.label(f"CPF_{kname}")
    a(f"s_sub_u32 s88, s88, CPF_{kname} - {kname}")
    a("s_subb_u32 s89, s89, 0")
    a("s_lshr_b32 s90, s2, 3")
    a("s_lshl_b32 s90, s90, 3")
    a(f"s_add_u32 s90, s90, s{wave}")
    a("s_lshl_b32 s90, s90, 6")
    for j in range(rounds):
        a(f"s_min_u32 s87, s90, {kname}_end - {kname} - 4")
        a("s_load_dword s91, s[88:89], s87")
        if j < rounds - 1: a("s_add_u32 s90, s90, 16384")
    if whole:
        a("s_lshl_b32 s90, s2, 3")
        a(f"s_add_u32 s90, s90, s{wave}")
        a("s_lshl_b32 s90, s90, 6")
        a(f"s_min_u32 s87, s90, code_end - {kname} - 4")
        a("s_load_dword s91, s[88:89], s87")
```

```python
from common import *
K3_LDS = 160*1024
PART_SPLIT = 64*40*1024
NSPLIT = 4
def gen_k3(fuse=False):
    a = Asm()
    a("s_cmp_ge_u32 s2, 256")
    a("s_cbranch_scc1 K3_END")
    a.stamp("3")
    a(f"s_load_dwordx2 s[4:5], s[0:1], {KA_WO}")
    a(f"s_load_dwordx2 s[6:7], s[0:1], {KA_WS}")
    claim(a, 1, 256)
    L, T0, T1, T2, LN16 = 248, 249, 250, 251, 252
    RD = [253, 254, 255, T2]
    VD = [123+i for i in range(5)]
    a(f"v_and_b32 v{L}, 63, v0")
    a(f"v_lshrrev_b32 v{T0}, 6, v0")
    a("s_nop 0")
    a(f"v_readfirstlane_b32 s14, v{T0}")
    a("s_and_b32 s15, s2, 3")
    a("s_bfe_u32 s16, s2, 0x20003")
    a("s_lshr_b32 s17, s2, 5")
    a("s_bfe_u32 s18, s2, 0x10002")
    a("s_lshl_b32 s18, s18, 3")
    a("s_add_u32 s17, s17, s18")
    a("s_and_b32 s51, s14, 3")
    a("s_lshr_b32 s52, s14, 2")
    a("s_lshl_b32 s18, s17, 2")
    a("s_add_u32 s18, s18, s51")
    a(f"v_lshlrev_b32 v{LN16}, 4, v{L}")
    a("s_mul_i32 s19, s16, 320")
    a("s_mul_i32 s40, s51, 16*1280")
    a("s_add_u32 s19, s19, s40")
    a("s_movk_i32 s41, 3277")
    a("s_movk_i32 s42, 1280")
    for p in range(5):
        a(f"v_add_u32 v{T0}, {64*p}, v{L}")
        a(f"v_mul_u32_u24 v{T1}, s41, v{T0}")
        a(f"v_lshrrev_b32 v{T1}, 16, v{T1}")
        a(f"v_mul_u32_u24 v{T2}, 20, v{T1}")
        a(f"v_sub_u32 v{T0}, v{T0}, v{T2}")
        a(f"v_mul_u32_u24 v{T1}, s42, v{T1}")
        a(f"v_lshl_add_u32 v{T0}, v{T0}, 4, v{T1}")
        a(f"v_add_u32 v{T0}, s19, v{T0}")
        a(f"v_add_u32 v{VD[p]}, {(-(p % 4)*1024) & 0xffffffff}, v{T0}")
    a("s_mul_i32 s43, s14, 5120")
    a("s_lshl_b32 s53, s15, 1")
    a("s_add_u32 s53, s53, s52")
    a("s_mul_i32 s44, s53, 512*1280")
    a("s_lshl_b32 s45, s18, 18")
    a("s_lshl_b32 s46, s53, 15")
    a("s_add_u32 s45, s45, s46")
    a("s_waitcnt lgkmcnt(0)")
    a.srd(20, 4, 5, 4096*640*2)
    a.srd(24, 6, 7, 16*MB, add=WS_CTX)
    a.srd(28, 6, 7, NSPLIT*PART_SPLIT, add=WS_PART)
    if fuse: a.srd(60, 6, 7, FLAG_SZ, add=WS_FLAG)
    def dma_W(g):
        def f():
            a(f"s_add_u32 m0, s43, {(g % 4)*40960}")
            a(f"s_add_u32 s47, s44, {g*64*1280}")
            for p in range(4):
                a.vmem(f"buffer_load_dwordx4 v{VD[p]}, s[20:23], s47 offen offset:{p*1024} lds", f"W{g}")
            a(f"s_add_u32 m0, s43, {(g % 4)*40960 + 4096}")
            a("s_nop 0")
            a.vmem(f"buffer_load_dwordx4 v{VD[4]}, s[20:23], s47 offen lds", f"W{g}")
        return f
    def ld_x(n):
        def f():
            a(f"s_add_u32 s48, s45, {n*1024}")
            a.vmem(f"buffer_load_dwordx4 {vr(4*n, 4)}, v{LN16}, s[24:27], s48 offen", f"X{n}")
        return f
    dma_W(0)()
    for n in range(4): ld_x(n)()
    dma_W(1)()
    code_pf(a, 'k3_kernel', 14, 1)
    SC = int(OPT.get("k3_sc", 0))
    if SC == 0:
        late = {0: [ld_x(4), ld_x(5), ld_x(6), ld_x(7)], 1: [dma_W(2)], 2: [ld_x(8), ld_x(9), ld_x(10), ld_x(11)], 3: [dma_W(3)]}
        for g in range(4, 8):
            n0 = 4*(g - 3)
            late[n0] = [ld_x(n0 + 8), ld_x(n0 + 9)]; late[n0 + 1] = [ld_x(n0 + 10), ld_x(n0 + 11)]; late[n0 + 2] = [dma_W(g)]
        late[19] = [ld_x(28), ld_x(29)]; late[20] = [ld_x(30), ld_x(31)]
    else:
        for n in range(4, 8): ld_x(n)()
        dma_W(2)()
        if SC == 2:
            for n in range(8, 12): ld_x(n)()
            dma_W(3)()
            late = {0: [ld_x(12), ld_x(13)], 1: [ld_x(14), ld_x(15)]}
        else: late = {0: [ld_x(8), ld_x(9), ld_x(10), ld_x(11)], 1: [dma_W(3)], 2: [ld_x(12), ld_x(13)], 3: [ld_x(14), ld_x(15)]}
        for g in range(4, 8):
            n0 = 4*(g - 3)
            late[n0] = [dma_W(g)]
            if g < 7: late[n0 + 1] = [ld_x(n0 + 12), ld_x(n0 + 13)]; late[n0 + 2] = [ld_x(n0 + 14), ld_x(n0 + 15)]
        late[17] = [ld_x(28), ld_x(29)]; late[18] = [ld_x(30), ld_x(31)]
    a.stamp("3")
    a(f"v_bfe_u32 v{T0}, v{L}, 2, 2")
    a(f"v_lshrrev_b32 v{T1}, 5, v{L}")
    a(f"v_lshl_add_u32 v{T0}, v{T1}, 2, v{T0}")
    a(f"v_mul_u32_u24 v{T0}, 320, v{T0}")
    a(f"v_bfe_u32 v{T1}, v{L}, 4, 1")
    a(f"v_lshl_add_u32 v{T0}, v{T1}, 5, v{T0}")
    a(f"v_and_b32 v{T1}, 3, v{L}")
    a(f"v_lshl_add_u32 v{RD[0]}, v{T1}, 3, v{T0}")
    a("s_mul_i32 s54, s52, 20480")
    a(f"v_add_u32 v{RD[0]}, s54, v{RD[0]}")
    for st in range(1, 4): a(f"v_add_u32 v{RD[st]}, {st*40960}, v{RD[0]}")
    ACC = lambda mb: 128 + 16*mb
    FW = lambda buf, mb: 208 + (buf*5 + mb)*4
    def reads(n):
        g, k = n // 4, n % 4
        return [f"ds_read_b64_tr_b16 {vr(FW(n % 2, mb) + 2*r2, 2)}, v{RD[g % 4]} offset:{(16*k + 8*r2)*320 + 64*mb}"
                for mb in range(5) for r2 in range(2)]
    def mf(n):
        return [f"v_mfma_f32_32x32x16_bf16 {vr(ACC(mb), 16)}, {vr(FW(n % 2, mb), 4)}, {vr(4*n, 4)}, {'0' if n == 0 else vr(ACC(mb), 16)}"
                for mb in range(5)]
    for n in range(33):
        tags = [f"X{n-1}"] if n else []
        fill = []
        if n < 32 and n % 4 == 0:
            a.wait_vm(tags + [f"W{n//4}"], "lgkmcnt(0)")
            a("s_barrier")
            if n % 8 == 0: a.stamp("3")
        else:
            a.wait_vm(tags, "lgkmcnt(0)")
        if n < 32: fill = reads(n)
        fill += late.get(n, [])
        if n == 0:
            for f in fill: f() if callable(f) else a(f)
        else: interleave(a, mf(n - 1), fill, per_gap=3)
    a.stamp("3")
    a("s_mul_i32 s54, s14, 10240")
    a(f"v_add_u32 v{T0}, s54, v{LN16}")
    a("s_xor_b32 s55, s14, 4")
    a("s_mul_i32 s55, s55, 10240")
    a(f"v_add_u32 v{T1}, s55, v{LN16}")
    a(f"s_mul_i32 s49, s15, {PART_SPLIT}")
    a("s_mul_i32 s50, s18, 40960")
    a("s_add_u32 s49, s49, s50")
    a("s_mul_i32 s50, s16, 10240")
    a("s_add_u32 s49, s49, s50")
    a("s_mul_i32 s50, s52, 5120")
    a("s_add_u32 s49, s49, s50")
    a("s_add_u32 s50, s49, 4096")
    a("s_cmp_eq_u32 s52, 0")
    a("s_cbranch_scc0 K3_KH1")
    for kh in range(2):
        if kh: a.label("K3_KH1")
        mine = 128 + 40*kh; other = 128 + 40*(1 - kh)
        for i in range(10): a(f"ds_write_b128 v{T0}, {vr(other + 4*i, 4)} offset:{1024*i}")
        a("s_waitcnt lgkmcnt(0)")
        a("s_barrier")
        for i in range(10): a(f"ds_read_b128 {vr(4*i, 4)}, v{T1} offset:{1024*i}")
        for hb in range(5):
            a(f"s_waitcnt lgkmcnt({8 - 2*hb})")
            for i in range(8): a(f"v_add_f32 v{mine + 8*hb + i}, v{mine + 8*hb + i}, v{8*hb + i}")
            for i in range(4): a(f"v_cvt_pk_bf16_f32 v{64 + 4*hb + i}, v{mine + 8*hb + 2*i}, v{mine + 8*hb + 2*i + 1}")
            a(f"buffer_store_dwordx4 {vr(64 + 4*hb, 4)}, v{LN16}, s[28:31], s{49 if hb < 4 else 50} offen offset:{(hb % 4)*1024} {OPT.get('k3_st', 'sc1')}")
        if fuse:
            if kh == 0: a("s_branch K3_FIN")
            continue
        nst = getattr(a, "nst", 0)
        a.stamp_out("3", 6, 14)
        a.nst = nst
        a("s_endpgm")
    if fuse:
        a.label("K3_FIN")
        a("s_lshl_b32 s57, s17, 4")
        a("s_lshl_b32 s58, s15, 2")
        a("s_add_u32 s58, s58, s16")
        a("s_add_u32 s2, s57, s58")
        a("s_lshl_b32 s58, s2, 2")
        a(f"s_add_u32 s58, s58, {FL_PART}")
        a("s_lshl_b32 s57, s57, 2")
        a(f"s_add_u32 s57, s57, {FL_PART}")
        a("s_mov_b32 s56, s14")
        a.stamp("3")
        signal(a, 60, 56, 0, 1, "s58")
        a.stamp("3")
        a("s_cmp_ge_u32 s56, 5")
        a("s_cbranch_scc1 K3_END")
        a("s_lshl_b32 s55, s56, 6")
        a(f"v_add_u32 v0, s55, v{L}")
        gen_k4(a, L)
    a.label("K3_END")
    a("s_endpgm")
    return a.text()

K4_LDS = 16*1024
def gen_k4(fa=None, L=None):
    a = fa or Asm()
    a.vm = []
    if not fa:
        a("s_cmp_ge_u32 s2, 256")
        a("s_cbranch_scc1 K4_END")
    a(f"s_load_dwordx2 s[4:5], s[0:1], {KA_X}")
    a(f"s_load_dwordx2 s[6:7], s[0:1], {KA_WS}")
    a("v_and_b32 v1, 7, v0")
    a("v_lshrrev_b32 v2, 3, v0")
    a("s_lshl_b32 s14, s2, 3")
    a("v_add_u32 v3, s14, v1")
    a("s_lshr_b32 s15, s2, 2")
    a("s_mul_i32 s16, s15, 40960")
    a("v_and_b32 v4, 31, v3")
    a("v_lshlrev_b32 v4, 4, v4")
    a("v_lshl_add_u32 v4, v2, 10, v4")
    a("v_add_u32 v4, s16, v4")
    a("s_movk_i32 s17, 1280")
    a("v_mul_u32_u24 v5, s17, v3")
    a("v_lshl_add_u32 v5, v2, 5, v5")
    a("s_waitcnt lgkmcnt(0)")
    a.srd(20, 4, 5, SZ_X)
    a.srd(24, 6, 7, NSPLIT*PART_SPLIT, add=WS_PART)
    a.srd(28, 6, 7, SZ_X, add=WS_H)
    a.srd(32, 6, 7, SZ_X, add=WS_HN)
    def ldx():
        a.vmem("buffer_load_dwordx4 v[96:99], v5, s[20:23], 0 offen", "x")
        a.vmem("buffer_load_dwordx4 v[100:103], v5, s[20:23], 0 offen offset:16", "x")
    if fa:
        ldx()
        wait_flags(a, 60, 56, L, 8, 9, 59, "s57", 16)
        a.stamp("3")
    for sp in range(NSPLIT):
        a(f"s_mov_b32 s18, {sp*PART_SPLIT}")
        a.vmem(f"buffer_load_dwordx4 {vr(32 + 8*sp, 4)}, v4, s[24:27], s18 offen", f"P{sp}")
        a.vmem(f"buffer_load_dwordx4 {vr(36 + 8*sp, 4)}, v4, s[24:27], s18 offen offset:512", f"P{sp}")
    if not fa: ldx()
    a("v_mul_u32_u24 v6, 80, v1")
    a("v_lshrrev_b32 v7, 4, v0")
    a("v_lshl_add_u32 v7, v7, 2, v6")
    src = [0, 1, 4, 5, 2, 3, 6, 7]
    V = lambda i: 16 + i
    for sp in range(NSPLIT):
        a.wait_vm([f"P{sp}"])
        for j in range(8):
            r = 32 + 8*sp + src[j]
            if sp == 0:
                a(f"v_lshlrev_b32 v{V(2*j)}, 16, v{r}")
                a(f"v_and_b32 v{V(2*j+1)}, 0xffff0000, v{r}")
            else:
                a(f"v_lshlrev_b32 v8, 16, v{r}")
                a(f"v_and_b32 v9, 0xffff0000, v{r}")
                a(f"v_add_f32 v{V(2*j)}, v{V(2*j)}, v8")
                a(f"v_add_f32 v{V(2*j+1)}, v{V(2*j+1)}, v9")
    a.wait_vm(["x"])
    for j in range(8):
        a(f"v_cvt_pk_bf16_f32 v8, v{V(2*j)}, v{V(2*j+1)}")
        a(f"v_lshlrev_b32 v{V(2*j)}, 16, v8")
        a(f"v_and_b32 v{V(2*j+1)}, 0xffff0000, v8")
        a(f"v_lshlrev_b32 v8, 16, v{96+j}")
        a(f"v_and_b32 v9, 0xffff0000, v{96+j}")
        a(f"v_add_f32 v{V(2*j)}, v{V(2*j)}, v8")
        a(f"v_add_f32 v{V(2*j+1)}, v{V(2*j+1)}, v9")
        a(f"v_cvt_pk_bf16_f32 v{32+j}, v{V(2*j)}, v{V(2*j+1)}")
        a(f"v_lshlrev_b32 v{V(2*j)}, 16, v{32+j}")
        a(f"v_and_b32 v{V(2*j+1)}, 0xffff0000, v{32+j}")
    a("buffer_store_dwordx4 v[32:35], v5, s[28:31], 0 offen" + " " + OPT.get("k4_st", "sc1"))
    a("buffer_store_dwordx4 v[36:39], v5, s[28:31], 0 offen offset:16" + " " + OPT.get("k4_st", "sc1"))
    red = [0]
    def row_sum(v):
        base = 12288 + red[0]*1024; red[0] += 1
        a("s_nop 1")
        a(f"v_add_f32_dpp {v}, {v}, {v} row_ror:8 row_mask:0xf bank_mask:0xf")
        a(f"ds_write_b32 v7, {v} offset:{base}")
        a("s_waitcnt lgkmcnt(0)")
        a("s_barrier")
        for i in range(5): a(f"ds_read_b128 {vr(40 + 4*i, 4)}, v6 offset:{base + 16*i}")
        a("s_waitcnt lgkmcnt(0)")
        a(f"v_add_f32 {v}, v40, v41")
        for i in range(2, 20): a(f"v_add_f32 {v}, {v}, v{40+i}")
        a(f"v_mul_f32 {v}, {1.0/640}, {v}")
    for ln in range(2):
        a(f"v_add_f32 v10, v{V(0)}, v{V(1)}")
        for i in range(2, 16): a(f"v_add_f32 v10, v10, v{V(i)}")
        row_sum("v10")
        a(f"v_sub_f32 v8, v{V(0)}, v10")
        a("v_mul_f32 v11, v8, v8")
        for i in range(1, 16):
            a(f"v_sub_f32 v8, v{V(i)}, v10")
            a("v_fmac_f32 v11, v8, v8")
        row_sum("v11")
        bf16r(a, "v11", "v11")
        a("v_add_f32 v11, 0x3727c5ac, v11")
        bf16r(a, "v11", "v11")
        a("v_sqrt_f32 v11, v11")
        a("s_nop 0")
        bf16r(a, "v11", "v11")
        a("v_rcp_f32 v11, v11")
        bf16r(a, "v10", "v10")
        for j in range(8):
            x0, x1 = V(2*j), V(2*j+1)
            a(f"v_sub_f32 v{x0}, v{x0}, v10")
            a(f"v_sub_f32 v{x1}, v{x1}, v10")
            a(f"v_cvt_pk_bf16_f32 v8, v{x0}, v{x1}")
            a(f"v_lshlrev_b32 v{x0}, 16, v8")
            a(f"v_and_b32 v{x1}, 0xffff0000, v8")
            a(f"v_mul_f32 v{x0}, v{x0}, v11")
            a(f"v_mul_f32 v{x1}, v{x1}, v11")
            a(f"v_cvt_pk_bf16_f32 v{64+j}, v{x0}, v{x1}")
            if ln == 0:
                a(f"v_lshlrev_b32 v{x0}, 16, v{64+j}")
                a(f"v_and_b32 v{x1}, 0xffff0000, v{64+j}")
    a("s_movk_i32 s17, 272")
    a("v_mul_u32_u24 v8, s17, v2")
    a("v_lshl_add_u32 v8, v1, 1, v8")
    for j in range(8):
        a(f"ds_write_b16 v8, v{64+j} offset:{32*j}")
        a(f"ds_write_b16_d16_hi v8, v{64+j} offset:{32*j+16}")
    a("v_lshrrev_b32 v9, 4, v0")
    a("v_add_u32 v10, v9, v0")
    a("v_lshlrev_b32 v10, 4, v10")
    a("v_and_b32 v11, 15, v0")
    a("v_lshlrev_b32 v11, 4, v11")
    a("v_lshl_add_u32 v11, v9, 16, v11")
    a("s_lshl_b32 s18, s15, 10")
    a("s_and_b32 s19, s2, 3")
    a("s_lshl_b32 s19, s19, 8")
    a("s_add_u32 s18, s18, s19")
    a("s_waitcnt lgkmcnt(0)")
    a("s_barrier")
    a("ds_read_b128 v[40:43], v10")
    a(f"ds_read_b128 v[44:47], v10 offset:{340*16}")
    a(f"s_add_u32 s19, s18, {20*65536}")
    a("s_waitcnt lgkmcnt(1)")
    a("buffer_store_dwordx4 v[40:43], v11, s[32:35], s18 offen" + " " + OPT.get("k4_st", "sc1"))
    a("s_waitcnt lgkmcnt(0)")
    a("buffer_store_dwordx4 v[44:47], v11, s[32:35], s19 offen" + " " + OPT.get("k4_st", "sc1"))
    if fa:
        a.stamp_out("3", 6, 56)
        return
    a.label("K4_END")
    a("s_endpgm")
    return a.text()
```

```python
from common import *
from k2 import hexf, CSCALE
K1_LDS = 160*1024
A_SLOT = [0, 32768, 65536]
W_SLOT = [98304 + 16384*i for i in range(4)]

def gen_k1():
    a = Asm()
    a("s_cmp_ge_u32 s2, 256")
    a("s_cbranch_scc1 K1_END")
    a.stamp("1")
    a(f"s_load_dwordx4 s[4:7], s[0:1], {KA_X}")
    a(f"s_load_dwordx4 s[8:11], s[0:1], {KA_WUK}")
    a(f"s_load_dwordx2 s[12:13], s[0:1], {KA_WS}")
    a(f"s_load_dwordx2 s[60:61], s[0:1], {KA_WQ}")
    a("v_and_b32 v1, 63, v0")
    a("v_lshrrev_b32 v2, 6, v0")
    a("s_nop 0")
    a("v_readfirstlane_b32 s14, v2")
    a("s_and_b32 s15, s2, 7")
    a("s_lshr_b32 s16, s2, 3")
    a("s_and_b32 s17, s16, 7")
    a("s_lshr_b32 s18, s16, 3")
    a("s_lshl_b32 s19, s15, 2")
    a("s_add_u32 s18, s18, s19")
    a("s_and_b32 s19, s18, 15")
    a("s_waitcnt lgkmcnt(0)")
    a.srd(20, 4, 5, SZ_X)
    a.srd(24, 6, 7, 2048*512*2)
    a("s_cmp_lt_u32 s18, 16")
    a("s_cselect_b32 s8, s8, s10")
    a("s_cselect_b32 s9, s9, s11")
    a(f"s_cselect_b32 s3, 0, {WS_VT - WS_KT}")
    a(f"s_or_b32 s3, s3, {WS_KT}")
    a.srd(28, 8, 9, 512*4096*2)
    a.srd(60, 60, 61, 640*4096*2)
    a("s_lshl_b32 s64, s2, 3")
    a("s_add_u32 s64, s64, s14")
    a("s_mul_i32 s64, s64, 3072")
    a.srd(32, 12, 13, SZ_X, add=WS_XN)
    a("s_add_u32 s36, s12, s3")
    a("s_addc_u32 s37, s13, 0")
    a("s_and_b32 s37, s37, 0xffff")
    a(f"s_mov_b32 s38, {16*MB}")
    a("s_mov_b32 s39, 0x00020000")
    if OPT.get("fuse") or OPT.get("claim"):
        a.srd(96, 12, 13, FLAG_SZ, add=WS_FLAG)
        a("s_lshl_b32 s40, s2, 3")
        a("s_add_u32 s40, s40, s14")
        a(f"s_cmp_ge_u32 s40, {FLAG_SZ//1024}")
        a("s_cbranch_scc1 K1_NOZ")
        a("v_lshlrev_b32 v3, 4, v0")
        for i in range(4): a(f"v_mov_b32 v{4+i}, 0")
        a("s_lshl_b32 s40, s2, 13")
        a("buffer_store_dwordx4 v[4:7], v3, s[96:99], s40 offen")
        a.label("K1_NOZ")
    a("s_lshl_b32 s40, s2, 3")
    a("s_add_u32 s40, s40, s14")
    a("s_mul_i32 s41, s40, 1280")
    a("v_lshlrev_b32 v3, 5, v1")
    a("v_add_u32 v3, s41, v3")
    a("v_cmp_gt_u32 vcc, 40, v1")
    a("v_mov_b32 v4, 0x80000000")
    a("s_nop 0")
    a("v_cndmask_b32 v3, v4, v3, vcc")
    a.vmem("buffer_load_dwordx4 v[8:11], v3, s[20:23], 0 offen", "x")
    a.vmem("buffer_load_dwordx4 v[12:15], v3, s[20:23], 0 offen offset:16", "x")
    VA = [200, 201, 202, 203]; VW = [204, 205]
    a("v_lshrrev_b32 v5, 3, v1")
    a("s_lshl_b32 s42, s17, 8")
    a("s_lshl_b32 s43, s14, 5")
    a("s_add_u32 s42, s42, s43")
    a("v_add_u32 v5, s42, v5")
    a("v_lshlrev_b32 v5, 10, v5")
    a("v_lshrrev_b32 v6, 4, v1")
    a("v_and_b32 v7, 7, v1")
    for p in range(4):
        a(f"v_xor_b32 v16, {(4*p)&7}, v6")
        a("v_xor_b32 v16, v16, v7")
        a("v_lshl_add_u32 v16, v16, 4, v5")
        a(f"v_add_u32 v{VA[p]}, {p*8*1024 - p*1024}, v16")
    a("v_lshrrev_b32 v5, 5, v1")
    a("v_and_b32 v6, 31, v1")
    a("s_lshl_b32 s43, s14, 2")
    a("s_lshl_b32 s44, s19, 9")
    for p in range(2):
        a(f"v_add_u32 v7, {2*p}, v5")
        a("v_lshlrev_b32 v16, 2, v7")
        a("v_xor_b32 v16, v16, v6")
        a("v_add_u32 v7, s43, v7")
        a("v_lshlrev_b32 v7, 13, v7")
        a("v_lshl_add_u32 v16, v16, 4, v7")
        a("v_add_u32 v16, s44, v16")
        a(f"v_add_u32 v{VW[p]}, {-p*1024 & 0xffffffff}, v16")
    a("s_lshl_b32 s45, s14, 12")
    a("s_lshl_b32 s46, s14, 11")
    def dma_A(t):
        def f():
            a(f"s_add_u32 m0, s45, {A_SLOT[t%3]}")
            a(f"s_mov_b32 s47, {t*128}")
            for p in range(4):
                a.vmem(f"buffer_load_dwordx4 v{VA[p]}, s[24:27], s47 offen offset:{p*1024} lds", f"A{t}")
        return f
    def dma_W(j):
        def f():
            a(f"s_add_u32 m0, s46, {W_SLOT[j%4]}")
            a(f"s_mov_b32 s48, {j*32*8192}")
            for p in range(2):
                a.vmem(f"buffer_load_dwordx4 v{VW[p]}, s[28:31], s48 offen offset:{p*1024} lds", f"W{j}")
        return f
    dma_A(0)(); dma_W(0)(); dma_W(1)()
    code_pf(a, 'k1_kernel', 14, 1, whole=True)
    late = {0: [dma_A(1)], 1: [dma_W(2), dma_W(3)], 3: [dma_A(2)]}
    RA = [206, 207, 208, 209]; RW = [210, 211]
    a("v_and_b32 v5, 31, v1")
    a("v_lshrrev_b32 v6, 5, v1")
    a("v_bfe_u32 v7, v1, 1, 3")
    a("v_xor_b32 v7, v7, v6")
    a("s_lshr_b32 s49, s14, 2")
    a("s_and_b32 s50, s14, 3")
    a("s_lshl_b32 s51, s49, 14")
    a("v_lshlrev_b32 v5, 7, v5")
    a("v_add_u32 v5, s51, v5")
    for ks in range(4):
        a(f"v_xor_b32 v16, {2*ks}, v7")
        a(f"v_lshl_add_u32 v{RA[ks]}, v16, 4, v5")
    a("v_bfe_u32 v5, v1, 2, 2")
    a("v_lshrrev_b32 v6, 5, v1")
    a("v_lshl_add_u32 v6, v6, 3, v5")
    a("v_lshlrev_b32 v6, 9, v6")
    a("v_bfe_u32 v7, v1, 4, 1")
    a("v_lshl_add_u32 v6, v7, 5, v6")
    a("v_and_b32 v7, 3, v1")
    a("v_lshl_add_u32 v6, v7, 3, v6")
    a("s_lshr_b32 s51, s50, 1")
    a("s_lshl_b32 s51, s51, 8")
    a(f"s_add_u32 s51, s51, {W_SLOT[0]}")
    a("v_add_u32 v6, s51, v6")
    a("s_and_b32 s51, s50, 1")
    a("s_lshl_b32 s51, s51, 1")
    for nb in range(2):
        a(f"s_add_u32 s52, s51, {nb}")
        a("v_xor_b32 v7, s52, v5")
        a(f"v_lshl_add_u32 v{RW[nb]}, v7, 6, v6")
    def ln(a):
        pass
        for i in range(8):
            a(f"v_lshlrev_b32 v{220+2*i}, 16, v{8+i}")
            a(f"v_and_b32 v{221+2*i}, 0xffff0000, v{8+i}")
        a("v_add_f32 v236, v220, v221")
        for i in range(2, 16): a(f"v_add_f32 v236, v236, v{220+i}")
        wave_sum(a, "v236", "v237", 56)
        a(f"v_mul_f32 v236, {1.0/640}, v236")
        a("v_sub_f32 v237, v220, v236")
        a("v_mul_f32 v238, v237, v237")
        for i in range(1, 16):
            a(f"v_sub_f32 v237, v{220+i}, v236")
            a("v_fmac_f32 v238, v237, v237")
        a("v_cndmask_b32 v238, 0, v238, vcc")
        wave_sum(a, "v238", "v237", 56)
        a(f"v_mul_f32 v238, {1.0/640}, v238")
        bf16r(a, "v238", "v238")
        a("v_add_f32 v238, 0x3727c5ac, v238")
        bf16r(a, "v238", "v238")
        a("v_sqrt_f32 v238, v238")
        a("s_nop 0")
        bf16r(a, "v238", "v238")
        a("v_rcp_f32 v238, v238")
        bf16r(a, "v236", "v236")
        for i in range(0, 16, 2):
            a(f"v_sub_f32 v{220+i}, v{220+i}, v236")
            a(f"v_sub_f32 v{221+i}, v{221+i}, v236")
            a(f"v_cvt_pk_bf16_f32 v237, v{220+i}, v{221+i}")
            a(f"v_lshlrev_b32 v{220+i}, 16, v237")
            a(f"v_and_b32 v{221+i}, 0xffff0000, v237")
            a(f"v_mul_f32 v{220+i}, v{220+i}, v238")
            a(f"v_mul_f32 v{221+i}, v{221+i}, v238")
            a(f"v_cvt_pk_bf16_f32 v{8+i//2}, v{220+i}, v{221+i}")
        a("s_lshr_b32 s41, s40, 5")
        a("s_mul_i32 s41, s41, 40960")
        a("s_and_b32 s42, s40, 31")
        a("s_lshl_b32 s42, s42, 4")
        a("s_add_u32 s41, s41, s42")
        a("v_lshlrev_b32 v3, 10, v1")
        a("v_add_u32 v3, s41, v3")
        a("v_cndmask_b32 v3, v4, v3, vcc")
        a("buffer_store_dwordx4 v[8:11], v3, s[32:35], 0 offen " + OPT.get("xn_st", ""))
        a("buffer_store_dwordx4 v[12:15], v3, s[32:35], 0 offen offset:512 " + OPT.get("xn_st", ""))
    la = Asm(); ln(la)
    lnops = [l.strip() for l in la.lines]
    a.stamp("1"); nst0 = getattr(a, "nst", 0)
    a("v_lshlrev_b32 v212, 4, v1")
    a("s_lshl_b32 s66, s16, 3")
    a("s_add_u32 s66, s66, s14")
    a("s_lshl_b32 s66, s66, 14")
    a("s_and_b32 s67, s15, 3")
    a("s_lshl_b32 s67, s67, 11")
    a("s_add_u32 s66, s66, s67")
    a("s_add_u32 s67, s66, 8192")
    a("s_lshl_b32 s68, s2, 3")
    a("s_add_u32 s68, s68, s14")
    a("s_lshl_b32 s68, s68, 10")
    a("s_cmp_lt_u32 s18, 16")
    a("s_cbranch_scc0 K1_V")
    vm_save = list(a.vm)
    for typ in range(2):
        a.vm = list(vm_save); a.nst = nst0
        if typ == 1: a.label("K1_V")
        ACC = lambda mb, nb: 64 + (mb*2+nb)*16
        FA = lambda buf, mb: 16 + buf*24 + mb*4
        FW = lambda buf, nb: 16 + buf*24 + 16 + nb*4
        RA2 = [213, 214, 215, 216]
        for ks in range(4):
            a(f"v_add_u32 v{RA2[ks]}, 0x10000, v{RA[ks]}")
        NS = 32
        SK = int(OPT.get("k1_skew", 8))
        steps = [(n, (0, 1, 2, 3)) for n in range(NS - SK)] + [(n, (0, 1)) for n in range(NS - SK, NS)] + [(n, (2, 3)) for n in range(NS - SK, NS)]
        def reads(i):
            n, mbs = steps[i]
            t, ks = n // 4, n % 4
            j, k2 = n // 2, n % 2
            buf = i % 2
            r = []
            for nb in range(2):
                for r2 in range(2):
                    off = W_SLOT[j % 4] - W_SLOT[0] + (16*k2 + 4*r2)*512
                    r.append(f"ds_read_b64_tr_b16 {vr(FW(buf, nb)+2*r2, 2)}, v{RW[nb]} offset:{off}")
            for mb in mbs:
                if t % 3 == 2: r.append(f"ds_read_b128 {vr(FA(buf, mb), 4)}, v{RA2[ks]} offset:{mb*4096}")
                else: r.append(f"ds_read_b128 {vr(FA(buf, mb), 4)}, v{RA[ks]} offset:{A_SLOT[t % 3] + mb*4096}")
            return r
        def mfmas(i):
            n, mbs = steps[i]
            buf = i % 2
            m = []
            for mb in mbs:
                for nb in range(2):
                    c = vr(ACC(mb, nb), 16)
                    cin = "0" if n == 0 else c
                    fa, fw = vr(FA(buf, mb), 4), vr(FW(buf, nb), 4)
                    if typ == 0: m.append(f"v_mfma_f32_32x32x16_bf16 {c}, {fw}, {fa}, {cin}")
                    else:        m.append(f"v_mfma_f32_32x32x16_bf16 {c}, {fa}, {fw}, {cin}")
            return m
        a("s_lshl_b32 s53, s19, 1")
        a("s_lshr_b32 s54, s50, 1")
        a("s_add_u32 s53, s53, s54")
        a("s_lshl_b32 s53, s53, 19")
        a("s_lshl_b32 s54, s17, 16")
        a("s_add_u32 s53, s53, s54")
        a("s_lshl_b32 s54, s49, 15")
        a("s_add_u32 s53, s53, s54")
        a("s_and_b32 s54, s50, 1")
        a(f"s_lshl_b32 s54, s54, {12 if typ == 0 else 11}")
        a("s_add_u32 s53, s53, s54")
        a(f"s_mov_b32 s65, {hexf(CSCALE)}")
        def unit(mb, nb, t, d):
            src = ACC(mb, nb) + 8*t
            o = []
            for i in range(4):
                if typ == 0:
                    o.append(f"v_mul_f32 v{src+2*i}, s65, v{src+2*i}")
                    o.append(f"v_mul_f32 v{src+2*i+1}, s65, v{src+2*i+1}")
                o.append(f"v_cvt_pk_bf16_f32 v{d+i}, v{src+2*i}, v{src+2*i+1}")
            if typ == 0: off = (mb >> 1)*16384 + (mb & 1)*8192 + (2*nb + t)*1024
            else:        off = (mb >> 1)*16384 + (2*(mb & 1) + t)*4096 + nb*1024
            o.append(f"s_add_u32 s55, s53, {off}")
            if not OPT.get("k1_nostore"): o.append(f"buffer_store_dwordx4 {vr(d, 4)}, v212, s[36:39], s55 offen {(OPT.get('k1_st', 'sc1') if mb < 2 else OPT.get('k1_st2', OPT.get('k1_st', 'sc1'))).replace('_', ' ')}")
            return o
        units = [(mb, nb, t) for mb in range(4) for nb in range(2) for t in range(2)]
        early = units[:8] if SK else []
        UPS = -(-8 // max(1, SK)) * int(OPT.get("k1_ups", 4))
        ne = 0
        lno = list(lnops)
        NT = len(steps)
        for i in range(NT + 1):
            fill = []
            n = steps[i][0] if i < NS else None
            if i < NS and n % 2 == 0:
                j = n // 2; t = j // 2
                a.wait_vm([f"A{t}", f"W{j}"], "lgkmcnt(0)")
                a("s_barrier")
                if n % 4 == 0: a.stamp("1")
                fill += reads(i)
                if j >= 1 and j + 3 < 16: fill.append(dma_W(j + 3))
                if j % 2 == 0 and t >= 1 and t + 2 < 8: fill.append(dma_A(t + 2))
            else:
                a("s_waitcnt lgkmcnt(0)")
                if i < NT: fill += reads(i)
            fill += late.get(i, [])
            if i in (25, 26, 27) and not OPT.get("nopf"):
                fill.append((lambda q: lambda: a.vmem(f"buffer_load_dwordx4 {vr(240 + 4*q, 4)}, v212, s[60:63], s64 offen offset:{q*1024}", "pf"))(i - 25))
            IP = int(OPT.get("k1_ipf", 0))
            if IP and IP <= i < IP + 5:
                w = [("s[24:27]", "s68", 0), ("s[28:31]", "s66", 0), ("s[28:31]", "s66", 1024), ("s[28:31]", "s67", 0), ("s[28:31]", "s67", 1024)][i - IP]
                d = (240, 244, 248, 252, 192)[i - IP]
                fill.append((lambda w, d: lambda: a.vmem(f"buffer_load_dwordx4 {vr(d, 4)}, v212, {w[0]}, {w[1]} offen offset:{w[2]}", "pf"))(w, d))
            if i >= 6:
                cnt = 8 if SK else 7
                for x in lno[:cnt]:
                    if x.startswith("buffer_store"): fill.append((lambda x: lambda: a.vmem(x, "xs"))(x))
                    else: fill.append(x)
                lno = lno[cnt:]
            pg = 2
            if i > NS:
                for _ in range(UPS):
                    if early:
                        fill += unit(*early.pop(0), (192, 196, 252)[ne % 3]); ne += 1
                pg = -(-len(fill) // 4)
            if i == 0:
                for f in fill: f() if callable(f) else a(f)
            else:
                interleave(a, mfmas(i - 1)[:1 if OPT.get("k1_nomfma") else 8], fill, per_gap=pg)
        assert not lno and not early
        a.stamp("1")
        a("s_nop 7"); a("s_nop 7")
        for k, u in enumerate(units[8:] if SK else units):
            for x in unit(*u, 16 + (k % 8)*4): a(x)
        a.stamp_out("1", 12, 14)
        a("s_endpgm")
    a.label("K1_END")
    a("s_endpgm")
    return a.text()
```

```python
from common import *
import math, struct
def hexf(x): return "0x%08x" % struct.unpack("<I", struct.pack("<f", x))[0]
K5_LDS = 160*1024
SZ_U = 40*54*1024

def gen_k56(which, fin=False, fout=False):
    k5 = which == 5
    P = "K5" if k5 else "K6"
    NWG = 216 if k5 else 256
    PER = 27 if k5 else 32
    NS = 8 if k5 else 7
    RS = 3456 if k5 else 4096
    XS = 64 if k5 else 54
    a = Asm()
    a(f"s_cmp_ge_u32 s2, {NWG}")
    a(f"s_cbranch_scc1 {P}_END")
    a.stamp(str(which))
    a(f"s_load_dwordx4 s[4:7], s[0:1], {KA_W1 if k5 else KA_W2}")
    a(f"s_load_dwordx2 s[8:9], s[0:1], {KA_WS}")
    if not k5: a(f"s_load_dwordx2 s[10:11], s[0:1], {KA_OUT}")
    claim(a, 2 if k5 else 3, 192 if k5 else 256)
    XR = lambda n, db: (n % 6)*20 + db*4
    ACC = lambda db, cb: 120 + (db*4 + cb)*4
    FW = lambda buf, cb: 200 + buf*16 + cb*4
    VD = [232, 233, 234, 235]; RW = [236, 237, 238, 239]
    LN16, L, T0, T1, T2, TID = 240, 241, 242, 243, 244, 245
    BI = 246
    a(f"v_mov_b32 v{TID}, v0")
    a(f"v_and_b32 v{L}, 63, v0")
    a(f"v_lshrrev_b32 v{T0}, 6, v0")
    a("s_nop 0")
    a(f"v_readfirstlane_b32 s14, v{T0}")
    if OPT.get("k5_map"):
        a("s_bfe_u32 s15, s2, 0x20001")
        a(f"s_mul_i32 s15, s15, {PER}")
        a("s_lshr_b32 s16, s2, 3")
        a("s_add_u32 s16, s16, s15")
        a("s_lshr_b32 s15, s16, 2")
        a("s_and_b32 s16, s16, 3")
        a("s_and_b32 s17, s2, 1")
        a("s_lshl_b32 s17, s17, 2")
        a("s_add_u32 s16, s16, s17")
    else:
        a("s_and_b32 s15, s2, 7")
        a(f"s_mul_i32 s15, s15, {PER}")
        a("s_lshr_b32 s16, s2, 3")
        a("s_add_u32 s16, s16, s15")
        a("s_lshr_b32 s15, s16, 3")
        a("s_and_b32 s16, s16, 7")
    a(f"v_lshlrev_b32 v{LN16}, 4, v{L}")
    a(f"v_lshrrev_b32 v{T0}, 3, v{L}")
    a(f"s_movk_i32 s17, {RS}")
    a(f"v_mul_u32_u24 v{T0}, s17, v{T0}")
    a("s_lshl_b32 s18, s15, 7")
    a(f"v_add_u32 v{T0}, s18, v{T0}")
    a(f"v_bfe_u32 v{T1}, v{L}, 4, {1 if k5 else 2}")
    a(f"v_lshlrev_b32 v{T1}, 1, v{T1}")
    a(f"v_and_b32 v{T2}, 7, v{L}")
    a(f"v_xor_b32 v{T1}, v{T1}, v{T2}")
    for p in range(4):
        if k5 and (p & 1):
            a(f"v_xor_b32 v{T2}, 4, v{T1}")
            a(f"v_lshl_add_u32 v{VD[p]}, v{T2}, 4, v{T0}")
        else:
            a(f"v_lshl_add_u32 v{VD[p]}, v{T1}, 4, v{T0}")
        if p: a(f"v_add_u32 v{VD[p]}, {8*p*RS - p*1024}, v{VD[p]}")
    a(f"s_mul_i32 s19, s14, {NS*32*RS}")
    a("s_mul_i32 s50, s14, 20480")
    a(f"s_mul_i32 s51, s16, {5*XS*1024}")
    a(f"s_mul_i32 s52, s14, {NS*1024}")
    a("s_add_u32 s51, s51, s52")
    for db in range(5):
        a(f"s_add_u32 s{40+db}, s51, {db*XS*1024}")
        a(f"s_add_u32 s{45+db}, s51, {db*XS*1024 + 4096}")
    ROT = OPT.get("k5_rot")
    if ROT:
        a({"1": "s_add_u32 s59, s15, s16", "2": "s_mov_b32 s59, s16", "3": "s_mov_b32 s59, s15"}[ROT])
        a("s_and_b32 s59, s59, 7")
        a(f"s_cmp_ge_u32 s59, {NS}")
        a("s_cselect_b32 s59, 0, s59")
        for n in range(NS):
            a(f"s_add_u32 s{60+n}, s59, {n}")
            a(f"s_cmp_ge_u32 s{60+n}, {NS}")
            a(f"s_cselect_b32 s58, {NS}, 0")
            a(f"s_sub_u32 s{60+n}, s{60+n}, s58")
    a("s_waitcnt lgkmcnt(0)")
    a.srd(20, 4, 5, 2048*1728*2)
    if k5:
        a.srd(24, 8, 9, SZ_X, add=WS_HN)
        a.srd(28, 8, 9, SZ_U, add=WS_U)
        a.srd(32, 6, 7, 1728*2)
    else:
        a.srd(24, 8, 9, SZ_U, add=WS_U)
        a.srd(28, 10, 11, SZ_X)
        a.srd(32, 6, 7, 2048*2)
        a.srd(36, 8, 9, SZ_X, add=WS_H)
    if fin or fout: a.srd(60, 8, 9, FLAG_SZ, add=WS_FLAG)
    def dma_W(n):
        def f():
            a(f"s_add_u32 m0, s50, {(n % 5)*4096}")
            if ROT:
                a(f"s_mul_i32 s53, s{60+n}, {32*RS}")
                a("s_add_u32 s53, s53, s19")
                a(f"s_lshl_b32 s{60+n}, s{60+n}, 10")
            else: a(f"s_add_u32 s53, s19, {n*32*RS}")
            for p in range(4):
                a.vmem(f"buffer_load_dwordx4 v{VD[p]}, s[20:23], s53 offen offset:{p*1024} lds", f"W{n}")
        return f
    def ld_x(n, db):
        def f():
            if ROT:
                a(f"s_add_u32 s{45+db}, s{40+db}, s{60+n}")
                a.vmem(f"buffer_load_dwordx4 {vr(XR(n, db), 4)}, v{LN16}, s[24:27], s{45+db} offen", f"X{n}")
            else: a.vmem(f"buffer_load_dwordx4 {vr(XR(n, db), 4)}, v{LN16}, s[24:27], s{40 + 5*(n // 4) + db} offen offset:{(n % 4)*1024}", f"X{n}")
        return f
    LA = int(OPT.get("k5_la", 2))
    if fin:
        LA = int(OPT.get("k5_lax", 2))
        a("s_cmp_eq_u32 s14, 0")
        a(f"s_cbranch_scc1 {P}_NOPF")
        for n in range(5): dma_W(n)()
        a.label(f"{P}_NOPF")
    else:
        for n in range(LA):
            dma_W(n)()
            for db in range(5): ld_x(n, db)()
        code_pf(a, f'k{which}_kernel', 14, 1)
    a.stamp(str(which))
    a(f"v_bfe_u32 v{T0}, v{L}, 2, 2")
    a(f"v_lshrrev_b32 v{T1}, 4, v{L}")
    a(f"v_lshl_add_u32 v{T2}, v{T1}, {3 if k5 else 2}, v{T0}")
    a(f"v_lshlrev_b32 v{T2}, 7, v{T2}")
    a(f"v_add_u32 v{T2}, s50, v{T2}")
    a(f"v_and_b32 v{RW[0]}, 3, v{L}")
    a(f"v_lshl_add_u32 v{T2}, v{RW[0]}, 3, v{T2}")
    a(f"v_lshrrev_b32 v{T0}, 1, v{T0}")
    a(f"v_and_b32 v{T1}, 1, v{T1}")
    a(f"v_lshl_add_u32 v{T0}, v{T1}, 1, v{T0}")
    for cb in range(4):
        a(f"v_xor_b32 v{T1}, {cb}, v{T0}")
        a(f"v_lshl_add_u32 v{RW[cb]}, v{T1}, 5, v{T2}")
    R2 = 512 if k5 else 2048
    extra = []
    if k5:
        a(f"v_lshrrev_b32 v{T0}, 4, v{L}")
        a(f"v_lshlrev_b32 v{T0}, 3, v{T0}")
        for cb in range(4):
            a.vmem(f"buffer_load_dwordx2 {vr(BI + 2*cb, 2)}, v{T0}, s[32:35], s18 offen offset:{32*cb}", "B")
    else:
        GO = [246, 247]; RA = [248, 249]; BO = [250, 251]
        a("s_movk_i32 s54, 6554")
        a("s_movk_i32 s55, 1280")
        a("s_mul_i32 s56, s15, 64*1280")
        a("s_mul_i32 s57, s16, 160")
        a("s_add_u32 s56, s56, s57")
        for q in range(2):
            a(f"v_add_u32 v{T0}, {512*q}, v{TID}")
            a(f"v_mul_u32_u24 v{T1}, s54, v{T0}")
            a(f"v_lshrrev_b32 v{T1}, 16, v{T1}")
            a(f"v_mul_u32_u24 v{T2}, 10, v{T1}")
            a(f"v_sub_u32 v{T0}, v{T0}, v{T2}")
            a(f"v_mul_u32_u24 v{T2}, s55, v{T1}")
            a(f"v_lshl_add_u32 v{GO[q]}, v{T0}, 4, v{T2}")
            a(f"v_lshlrev_b32 v{BO[q]}, 1, v{T1}")
            a(f"v_lshlrev_b32 v{T2}, 1, v{T0}")
            a(f"v_xor_b32 v{T2}, v{T2}, v{T1}")
            a(f"v_and_b32 v{T2}, 15, v{T2}")
            a(f"v_lshlrev_b32 v{T2}, 4, v{T2}")
            a(f"v_lshrrev_b32 v{T1}, 4, v{T1}")
            a(f"v_lshl_add_u32 v{T2}, v{T1}, 10, v{T2}")
            a(f"v_and_b32 v{T1}, 1, v{T0}")
            a(f"v_lshl_add_u32 v{T2}, v{T1}, 9, v{T2}")
            a(f"v_lshrrev_b32 v{T1}, 1, v{T0}")
            a(f"v_lshl_add_u32 v{RA[q]}, v{T1}, 12, v{T2}")
        HR = [20, 24]; BR = [28, 29]
        def ld_h():
            for q in range(2):
                if q == 1:
                    a("s_cmp_ge_u32 s14, 2")
                    a("s_cselect_b32 s58, 0x7fffffff, s56")
                    a("s_cselect_b32 s59, 0x7fffffff, s18")
                a.vmem(f"buffer_load_dwordx4 {vr(HR[q], 4)}, v{GO[q]}, s[36:39], s{56 if q == 0 else 58} offen", "H")
                a.vmem(f"buffer_load_ushort v{BR[q]}, v{BO[q]}, s[32:35], s{18 if q == 0 else 59} offen", "H")
        extra = [ld_h]
    def reads(n):
        return [f"ds_read_b64_tr_b16 {vr(FW(n % 2, cb) + 2*r2, 2)}, v{RW[cb]} offset:{(n % 5)*4096 + r2*R2}"
                for cb in range(4) for r2 in range(2)]
    def mf(n):
        m = []
        for cb in range(4):
            for db in range(5):
                c = vr(ACC(db, cb), 4)
                w, x = vr(FW(n % 2, cb), 4), vr(XR(n, db), 4)
                ab = f"{w}, {x}" if k5 else f"{x}, {w}"
                m.append(f"v_mfma_f32_16x16x32_bf16 {c}, {ab}, {'0' if n == 0 else c}")
        return m
    if fin:
        if k5:
            a(f"s_movk_i32 s58, {FL_HN}")
            wait_flags(a, 60, 14, L, T0, 0, 59, "s58", 64, w4=True)
        else:
            a(f"s_lshl_b32 s58, s16, 7")
            wait_flags(a, 60, 14, L, T0, T1, 59, "s58", 27)
        a.stamp(str(which))
        a("s_cmp_lg_u32 s14, 0")
        a(f"s_cbranch_scc1 {P}_HAVEW")
        vm_save = list(a.vm)
        for n in range(5): dma_W(n)()
        a.vm = vm_save
        a.label(f"{P}_HAVEW")
        for n in range(LA):
            for db in range(5): ld_x(n, db)()
    for n in range(NS + 1):
        tags = ([f"X{n-1}"] if n else []) + ([f"W{n}"] if n < NS else [])
        a.wait_vm(tags, "lgkmcnt(0)")
        a.stamp(str(which))
        fill = []
        if n < NS: fill += reads(n)
        if fin:
            if n + LA < NS: fill += [ld_x(n + LA, db) for db in range(5)]
            if n >= 1 and n + 4 < NS: fill += [dma_W(n + 4)]
        elif n + LA < NS: fill += [dma_W(n + LA)] + [ld_x(n + LA, db) for db in range(5)]
        if n == 5: fill += extra
        if n == 0:
            for f in fill: f() if callable(f) else a(f)
        else: interleave(a, mf(n - 1)[:1 if OPT.get("k5_nomfma") else 20], fill, per_gap=1)
    if k5:
        a(f"v_add_u32 v{T0}, s50, v{LN16}")
        WR = lambda db: T0
    else:
        a(f"v_lshrrev_b32 v{T1}, 4, v{L}")
        a(f"v_lshlrev_b32 v{T1}, 4, v{T1}")
        a(f"v_xor_b32 v{T1}, v{T1}, v{LN16}")
        a(f"v_add_u32 v{T1}, s50, v{T1}")
        for db in range(4): a(f"v_xor_b32 v{FW(NS % 2, db)}, {64*db}, v{T1}")
        WR = lambda db: FW(NS % 2, db & 3)
    a("s_nop 7")
    for cb in range(4):
        for db in range(5):
            a(f"ds_write_b128 v{WR(db)}, {vr(ACC(db, cb), 4)} offset:{(db*4 + cb)*1024}")
    if k5:
        a("s_lshl_b32 s54, s14, 12")
        a(f"v_add_u32 v{T0}, s54, v{LN16}")
        a(f"v_add_u32 v{T1}, 81920, v{T0}")
        a("s_waitcnt vmcnt(0) lgkmcnt(0)")
        a("s_barrier")
        a.stamp(str(which))
        a("s_cmp_ge_u32 s14, 5")
        a(f"s_cbranch_scc1 {P}_END")
        c1 = -2*math.log2(math.e)*0.7978845608028654
        a(f"s_mov_b32 s56, {hexf(c1)}")
        a(f"v_mov_b32 v{T2}, {hexf(c1*0.044715)}")
        a("s_mul_i32 s57, s16, 5")
        a("s_add_u32 s57, s57, s14")
        a("s_mul_i32 s57, s57, 54*1024")
        a("s_lshl_b32 s58, s15, 11")
        a("s_add_u32 s57, s57, s58")
        def rd(cb, ww): return f"ds_read_b128 {vr(cb*32 + ww*4, 4)}, v{T0 if ww < 4 else T1} offset:{(ww % 4)*20480 + cb*1024}"
        for ww in range(8): a(rd(0, ww))
        for cb in range(4):
            if cb < 3:
                for ww in range(7): a(rd(cb + 1, ww))
                a("s_waitcnt lgkmcnt(7)")
                a(rd(cb + 1, 7))
            else: a("s_waitcnt lgkmcnt(0)")
            b = cb*32
            for st in (16, 8, 4):
                for i in range(st): a(f"v_add_f32 v{b+i}, v{b+i}, v{b+st+i}")
            for j in range(2):
                x0, x1, t0, t1 = b + 2*j, b + 2*j + 1, b + 8 + 2*j, b + 9 + 2*j
                a(f"v_cvt_pk_bf16_f32 v{t0}, v{x0}, v{x1}")
                a(f"v_lshlrev_b32 v{x0}, 16, v{t0}")
                a(f"v_and_b32 v{x1}, 0xffff0000, v{t0}")
                a(f"v_lshlrev_b32 v{t0}, 16, v{BI + 2*cb + j}")
                a(f"v_and_b32 v{t1}, 0xffff0000, v{BI + 2*cb + j}")
                a(f"v_add_f32 v{x0}, v{x0}, v{t0}")
                a(f"v_add_f32 v{x1}, v{x1}, v{t1}")
                a(f"v_cvt_pk_bf16_f32 v{t0}, v{x0}, v{x1}")
                a(f"v_lshlrev_b32 v{x0}, 16, v{t0}")
                a(f"v_and_b32 v{x1}, 0xffff0000, v{t0}")
                for x, t in ((x0, t0), (x1, t1)):
                    a(f"v_mul_f32 v{t}, v{x}, v{x}")
                    a(f"v_fma_f32 v{t}, v{t}, v{T2}, s56")
                    a(f"v_mul_f32 v{t}, v{t}, v{x}")
                    a(f"v_exp_f32 v{t}, v{t}")
                for x, t in ((x0, t0), (x1, t1)): a(f"v_add_f32 v{t}, 1.0, v{t}")
                for x, t in ((x0, t0), (x1, t1)): a(f"v_rcp_f32 v{t}, v{t}")
                a("s_nop 0")
                for x, t in ((x0, t0), (x1, t1)): a(f"v_mul_f32 v{x}, v{x}, v{t}")
                a(f"v_cvt_pk_bf16_f32 v{128 + 2*cb + j}, v{x0}, v{x1}")
            if cb & 1:
                a(f"buffer_store_dwordx4 {vr(128 + 4*(cb >> 1), 4)}, v{LN16}, s[28:31], s57 offen offset:{(cb >> 1)*1024} {'sc1' if fout else OPT.get('k5_st', 'sc1')}")
        if fout:
            a("s_lshl_b32 s58, s16, 5")
            a("s_add_u32 s58, s58, s15")
            a("s_lshl_b32 s58, s58, 2")
            signal(a, 60, 14, 0, 1, "s58")
    else:
        for q in range(2):
            a(f"v_xor_b32 v{VD[q]}, 16, v{RA[q]}")
            a(f"v_add_u32 v{VD[2+q]}, 81920, v{RA[q]}")
            a(f"v_add_u32 v{RW[q]}, 81920, v{VD[q]}")
        a("s_waitcnt vmcnt(0) lgkmcnt(0)")
        a("s_barrier")
        for q in range(2):
            if q == 1:
                a("s_cmp_ge_u32 s14, 2")
                a(f"s_cbranch_scc1 {P}_END")
            b = 32 + q*64
            def rd(hf, ww):
                base = (RA[q] if hf == 0 else VD[q]) if ww < 4 else (VD[2+q] if hf == 0 else RW[q])
                return f"ds_read_b128 {vr(b + hf*32 + ww*4, 4)}, v{base} offset:{(ww % 4)*20480 + hf*256}"
            for ww in range(8): a(rd(0, ww))
            for ww in range(7): a(rd(1, ww))
            a(f"v_lshlrev_b32 v{BR[q]}, 16, v{BR[q]}")
            for hf in range(2):
                if hf == 0:
                    a("s_waitcnt lgkmcnt(7)")
                    a(rd(1, 7))
                else: a("s_waitcnt lgkmcnt(0)")
                bb = b + hf*32
                for st in (16, 8, 4):
                    for i in range(st): a(f"v_add_f32 v{bb+i}, v{bb+i}, v{bb+st+i}")
                for j in range(2):
                    x0, x1, t0, t1 = bb + 2*j, bb + 2*j + 1, bb + 8 + 2*j, bb + 9 + 2*j
                    hreg = HR[q] + 2*hf + j
                    a(f"v_cvt_pk_bf16_f32 v{t0}, v{x0}, v{x1}")
                    a(f"v_lshlrev_b32 v{x0}, 16, v{t0}")
                    a(f"v_and_b32 v{x1}, 0xffff0000, v{t0}")
                    a(f"v_add_f32 v{x0}, v{x0}, v{BR[q]}")
                    a(f"v_add_f32 v{x1}, v{x1}, v{BR[q]}")
                    a(f"v_cvt_pk_bf16_f32 v{t0}, v{x0}, v{x1}")
                    a(f"v_lshlrev_b32 v{x0}, 16, v{t0}")
                    a(f"v_and_b32 v{x1}, 0xffff0000, v{t0}")
                    a(f"v_lshlrev_b32 v{t0}, 16, v{hreg}")
                    a(f"v_and_b32 v{t1}, 0xffff0000, v{hreg}")
                    a(f"v_add_f32 v{x0}, v{x0}, v{t0}")
                    a(f"v_add_f32 v{x1}, v{x1}, v{t1}")
                    a(f"v_cvt_pk_bf16_f32 v{hreg}, v{x0}, v{x1}")
            a(f"buffer_store_dwordx4 {vr(HR[q], 4)}, v{GO[q]}, s[28:31], s56 offen {OPT.get('k6_st', 'sc1')}")
    a.stamp_out(str(which), 8, 14)
    a.label(f"{P}_END")
    a("s_endpgm")
    return a.text()
```

```python
from common import *
import math, struct
K2_LDS = 160*1024
CSCALE = (128 ** -0.5) * math.log2(math.e)
THR = 8.0
O0, Q0, SB, P0, FR, NEGM = 0, 64, [96, 128], 160, 176, 208
vL, vMX, vT0, vT1, vK, vV, vLANE16, vQI = 224, 246, 226, 227, 228, 229, 230, 231
VE = [232 + i for i in range(8)]
VW = [240, 241]
RW = [242, 243, 244, 245]
tL, t5, t6, t7 = 248, 249, 250, 251
vL2 = 225
WOFF = 48*1024
VBASE = 96*1024
def hexf(x): return "0x%08x" % struct.unpack("<I", struct.pack("<f", x))[0]

def gen_k2(D=8):
    a = Asm()
    a("s_cmp_ge_u32 s2, 256")
    a("s_cbranch_scc1 K2_END")
    a.stamp("2")
    a(f"s_load_dwordx2 s[4:5], s[0:1], {KA_WQ}")
    a(f"s_load_dwordx2 s[6:7], s[0:1], {KA_WS}")
    a(f"s_load_dwordx2 s[8:9], s[0:1], {KA_WO}")
    a(f"s_load_dwordx2 s[10:11], s[0:1], {KA_W1}")
    a(f"s_load_dwordx2 s[12:13], s[0:1], {KA_W2}")
    claim(a, 0, 256)
    a(f"v_and_b32 v{tL}, 63, v0")
    a(f"v_lshrrev_b32 v{t5}, 6, v0")
    a("s_nop 0")
    a(f"v_readfirstlane_b32 s14, v{t5}")
    a("s_and_b32 s15, s2, 7")
    a("s_lshl_b32 s15, s15, 2")
    a("s_bfe_u32 s16, s2, 0x20003")
    a("s_add_u32 s15, s15, s16")
    a("s_lshr_b32 s16, s2, 5")
    a("s_sub_u32 s17, 15, s16")
    a("s_lshl_b32 s18, s17, 1")
    a("s_add_u32 s18, s18, 2")
    a("s_cmp_ge_u32 s14, 4")
    a("s_cselect_b32 s19, s16, s17")
    a("s_cselect_b32 s60, 1, 0")
    a("s_lshl_b32 s61, s19, 1")
    a("s_add_u32 s61, s61, 2")
    a("s_and_b32 s62, s14, 3")
    a("s_lshl_b32 s63, s19, 2")
    a("s_add_u32 s63, s63, s62")
    a(f"v_lshlrev_b32 v{vLANE16}, 4, v{tL}")
    a(f"v_lshrrev_b32 v{t5}, 4, v{tL}")
    a(f"v_lshlrev_b32 v{t6}, 2, v{t5}")
    a(f"v_and_b32 v{t7}, 15, v{tL}")
    a(f"v_xor_b32 v{t6}, v{t6}, v{t7}")
    a("s_lshl_b32 s40, s14, 3")
    a(f"v_add_u32 v{t5}, s40, v{t5}")
    a(f"v_lshlrev_b32 v{t5}, 13, v{t5}")
    a(f"v_lshl_add_u32 v{t5}, v{t6}, 4, v{t5}")
    a("s_lshl_b32 s40, s15, 8")
    a(f"v_add_u32 v{VW[0]}, s40, v{t5}")
    a(f"v_add_u32 v{VW[1]}, {4*8192 - 1024}, v{VW[0]}")
    a("s_lshl_b32 s41, s14, 11")
    a("s_mul_i32 s42, s63, 40960")
    a("s_lshl_b32 s43, s15, 19")
    a("s_add_u32 s44, s43, s41")
    a("s_lshl_b32 s45, s62, 12")
    a("s_add_u32 s46, s43, s45")
    a("s_waitcnt lgkmcnt(0)")
    a.srd(20, 4, 5, 640*4096*2)
    a.srd(24, 6, 7, SZ_X, add=WS_XN)
    a.srd(28, 6, 7, 16*MB, add=WS_KT)
    a.srd(32, 6, 7, 16*MB, add=WS_VT)
    a.srd(36, 6, 7, 16*MB, add=WS_CTX)
    def dma_W(t):
        def f():
            a(f"s_add_u32 m0, s41, {WOFF + (t % 4)*16384}")
            a(f"s_mov_b32 s47, {t*64*8192}")
            for p in range(2):
                a.vmem(f"buffer_load_dwordx4 v{VW[p]}, s[20:23], s47 offen offset:{p*1024} lds", f"W{t}")
        return f
    def ld_x(n):
        def f():
            a(f"s_add_u32 s48, s42, {n*1024}")
            a.vmem(f"buffer_load_dwordx4 {vr((n % 16)*4, 4)}, v{vLANE16}, s[24:27], s48 offen", f"X{n}")
        return f
    def dma_KV(kind, j):
        def f():
            lds = (j % 4)*16384 if kind == "K" else VBASE + ((j + 2) % 4)*16384
            srd = "s[28:31]" if kind == "K" else "s[32:35]"
            a(f"s_add_u32 m0, s41, {lds}")
            a(f"s_add_u32 s47, s44, {j*16384}")
            for p in range(2):
                a.vmem(f"buffer_load_dwordx4 v{vLANE16}, {srd}, s47 offen offset:{p*1024} lds", "KV")
        return f
    dma_W(0)()
    for n in range(4): ld_x(n)()
    dma_W(1)()
    for n in range(4, 6): ld_x(n)()
    code_pf(a, 'k2_kernel', 14, 3)
    late = {0: [ld_x(6), ld_x(7), dma_W(2), ld_x(8), ld_x(9)], 1: [ld_x(10), ld_x(11), dma_W(3)], 2: [ld_x(12), ld_x(13)], 3: [ld_x(14), ld_x(15)]}
    a(f"v_bfe_u32 v{t5}, v{tL}, 2, 2")
    a(f"v_lshrrev_b32 v{t6}, 5, v{tL}")
    a(f"v_lshl_add_u32 v{t6}, v{t6}, 3, v{t5}")
    a(f"v_lshlrev_b32 v{t6}, 8, v{t6}")
    a(f"v_bfe_u32 v{t7}, v{tL}, 4, 1")
    a(f"v_lshl_add_u32 v{t6}, v{t7}, 5, v{t6}")
    a(f"v_and_b32 v{t7}, 3, v{tL}")
    a(f"v_lshl_add_u32 v{t6}, v{t7}, 3, v{t6}")
    a(f"v_add_u32 v{t6}, {WOFF}, v{t6}")
    for db in range(4):
        a(f"v_xor_b32 v{t7}, {db}, v{t5}")
        a(f"v_lshl_add_u32 v{RW[db]}, v{t7}, 6, v{t6}")
    a(f"v_and_b32 v{t5}, 31, v{tL}")
    a(f"v_lshrrev_b32 v{t6}, 5, v{tL}")
    a(f"v_lshlrev_b32 v{t6}, 2, v{t6}")
    a(f"v_sub_u32 v{t5}, v{t5}, v{t6}")
    a("s_lshl_b32 s40, s63, 5")
    a(f"v_add_u32 v{vQI}, s40, v{t5}")
    QA = lambda db: 96 + db*16
    FWq = lambda buf, db: 176 + buf*16 + db*4
    def readsA(n):
        t, ks, buf = n // 4, n % 4, n % 2
        return [f"ds_read_b64_tr_b16 {vr(FWq(buf, db) + 2*r2, 2)}, v{RW[db]} offset:{(t % 4)*16384 + (16*ks + 4*r2)*256}"
                for db in range(4) for r2 in range(2)]
    def mfA(n):
        buf = n % 2
        return [f"v_mfma_f32_32x32x16_bf16 {vr(QA(db), 16)}, {vr(FWq(buf, db), 4)}, {vr((n % 16)*4, 4)}, {'0' if n == 0 else vr(QA(db), 16)}"
                for db in range(4)]
    kvpro = [dma_KV("K", 0), dma_KV("K", 1), dma_KV("V", 0), dma_KV("K", 2), dma_KV("V", 1)]
    for n in range(41):
        fill = []
        tags = [f"X{n-1}"] if n >= 1 else []
        if n < 40 and n % 4 == 0:
            t = n // 4
            a.wait_vm(tags + [f"W{t}"], "lgkmcnt(0)")
            a("s_barrier")
            if n % 8 == 0: a.stamp("2")
            fill += readsA(n)
            if t >= 1 and t + 3 < 10: fill.append(dma_W(t + 3))
        else:
            a.wait_vm(tags, "lgkmcnt(0)")
            if n < 40: fill += readsA(n)
        fill += late.get(n, [])
        if n >= 2 and n - 2 + 16 < 40: fill.append(ld_x(n - 2 + 16))
        if n % int(OPT.get("k2_kvs", 2)) == 2 % int(OPT.get("k2_kvs", 2)) and kvpro and n >= int(OPT.get("k2_kv0", 24)): fill.append(kvpro.pop(0))
        if n == 0:
            for f in fill: f() if callable(f) else a(f)
        else:
            interleave(a, mfA(n - 1), fill, per_gap=3)
    assert not kvpro
    a("s_waitcnt vmcnt(0)")
    a("s_barrier")
    a.vm = []
    a.stamp("2"); a("s_waitcnt lgkmcnt(0)")
    def dma_stage():
        a("s_add_u32 s65, s64, 1")
        a("s_and_b32 s66, s65, 3")
        a("s_lshl_b32 s66, s66, 14")
        a("s_add_u32 m0, s66, s45")
        a("s_lshl_b32 s65, s65, 14")
        a("s_add_u32 s65, s65, s46")
        for p in range(4):
            a(f"buffer_load_dwordx4 v{vLANE16}, s[28:31], s65 offen offset:{p*1024} lds")
        a("s_add_u32 s66, s64, 2")
        a("s_and_b32 s66, s66, 3")
        a("s_lshl_b32 s66, s66, 14")
        a("s_add_u32 s66, s66, s45")
        a(f"s_add_u32 m0, s66, {VBASE}")
        a("s_sub_u32 s65, s65, 16384")
        for p in range(4):
            a(f"buffer_load_dwordx4 v{vLANE16}, s[32:35], s65 offen offset:{p*1024} lds")
    FLAG = 80*1024
    def kread(slot, n, vaddr): return f"ds_read_b128 {vr(FR + 4*(slot % 8), 4)}, v{vaddr} offset:{n*1024}"
    def qk(buf, n, cin):
        kb, st = n // 8, n % 8
        d = vr(SB[buf] + 16*kb, 16)
        c = cin if st == 0 else d
        return f"v_mfma_f32_32x32x16_bf16 {d}, {vr(FR + 4*(n % 8), 4)}, {vr(Q0 + 4*st, 4)}, {c}"
    def pv(n):
        c, db = n // 4, n % 4
        d = vr(O0 + 16*db, 16)
        return f"v_mfma_f32_32x32x16_bf16 {d}, {vr(FR + 4*(n % 8), 4)}, {vr(P0 + 4*c, 4)}, {d}"
    SP = [56, 58, 92, 94]
    def mask_ops(buf):
        out = [f"s_lshl_b32 s67, s54, 6", f"v_subrev_u32 v{vT1}, s67, v{vQI}", f"v_mov_b32 v{vT0}, s52"]
        for kb in range(2):
            for r0 in range(0, 16, 4):
                for r in range(r0, r0 + 4):
                    out.append(f"v_cmp_le_i32 s[{SP[r & 3]}:{SP[r & 3]+1}], {32*kb + 8*(r >> 2) + (r & 3)}, v{vT1}")
                for r in range(r0, r0 + 4):
                    sreg = SB[buf] + 16*kb + r
                    out.append(f"v_cndmask_b32 v{sreg}, v{vT0}, v{sreg}, s[{SP[r & 3]}:{SP[r & 3]+1}]")
        return out
    def max_ops(buf):
        s = SB[buf]
        ops = [f"v_max3_f32 v{vMX}, v{s}, v{s+1}, v{s+2}", f"v_max3_f32 v{vT0}, v{s+3}, v{s+4}, v{s+5}"]
        k = 6; tog = 0
        while k + 1 < 32:
            d = vMX if tog == 0 else vT0
            ops.append(f"v_max3_f32 v{d}, v{d}, v{s+k}, v{s+k+1}"); k += 2; tog ^= 1
        ops += [f"v_max_f32 v{vMX}, v{vMX}, v{vT0}", f"v_mov_b32 v{vT0}, v{vMX}", "s_nop 1",
                f"v_permlane32_swap_b32 v{vMX}, v{vT0}", f"v_max_f32 v{vMX}, v{vMX}, v{vT0}"]
        return ops
    def chunk_ops(buf, c):
        s = SB[buf] + 8*c
        ops = []
        PK = bool(OPT.get("k2_pk"))
        def fin(i):
            if PK: ops.append(f"v_pk_add_f32 v[{vL}:{vL2}], v[{vL}:{vL2}], v[{VE[i]}:{VE[i+1]}]")
            else: ops.append(f"v_add_f32 v{vL}, v{vL}, v{VE[i]}")
            ops.append(f"v_cvt_pk_bf16_f32 v{P0 + 4*c + i//2}, v{VE[i]}, v{VE[i+1]}")
            if not PK: ops.append(f"v_add_f32 v{vL2}, v{vL2}, v{VE[i+1]}")
        for i in range(0, 8, 2):
            ops.append(f"v_exp_f32 v{VE[i]}, v{s+i}")
            ops.append(f"v_exp_f32 v{VE[i+1]}, v{s+i+1}")
            if i >= 2: fin(i - 2)
        fin(6)
        return ops
    def spread(ops, g0, g1, sched):
        cost = [8 if o.startswith("v_exp") else 4 for o in ops]
        tot = sum(cost); acc = 0
        for o, c in zip(ops, cost):
            sched[g0 + min(g1 - g0 - 1, int((acc + c/2) * (g1 - g0) / tot))].append(o); acc += c
    def sync_and_load(tagl, nw=8):
        def f():
            a("s_add_u32 s64, s51, 2")
            a("s_cmp_lt_u32 s64, s18")
            a(f"s_cbranch_scc1 {tagl}_w8")
            a("s_waitcnt vmcnt(0)")
            a.label(f"{tagl}_w8")
            a(f"s_waitcnt vmcnt({nw})")
            a("s_barrier")
        def g():
            a("s_cmp_eq_u32 s60, 0")
            a(f"s_cbranch_scc1 {tagl}_nl")
            a("s_add_u32 s64, s51, 3")
            a("s_cmp_ge_u32 s64, s18")
            a(f"s_cbranch_scc1 {tagl}_nl")
            if not OPT.get("k2_nodma"): dma_stage()
            a.label(f"{tagl}_nl")
        return f, g
    def updK():
        a("s_add_u32 s55, s51, 2"); a("s_and_b32 s55, s55, 3"); a("s_lshl_b32 s55, s55, 14")
        a(f"v_add_u32 v{vK}, s55, v{vLANE16}")
    def updV():
        a("s_add_u32 s55, s51, 3"); a("s_and_b32 s55, s55, 3"); a("s_lshl_b32 s55, s55, 14")
        a(f"s_add_u32 s55, s55, {VBASE}")
        a(f"v_add_u32 v{vV}, s55, v{vLANE16}")
    WS4 = OPT.get("k2_w2") is None
    def lwait(n):
        if WS4:
            if n % 4 == 0: a("s_waitcnt lgkmcnt(4)")
        elif n % 2 == 0: a("s_waitcnt lgkmcnt(6)")
    def body(name, cur, kind, safe):
        nxt = cur ^ 1
        a.label(name)
        f_sync, g_load = sync_and_load(name)
        if kind != 'L':
            sched = {n: [] for n in range(32)}
            ch = [chunk_ops(cur, c) for c in range(4)]
            v2 = []
            if kind == 'M': v2 += ["s_add_u32 s54, s51, 1"] + mask_ops(nxt)
            if safe: v2 += max_ops(nxt)
            if v2:
                spread(ch[0] + ch[1] + ch[2], 0, 16, sched)
                spread(ch[3], 16, 22, sched)
                spread(v2, 22, 32, sched)
            else:
                spread(ch[0] + ch[1] + ch[2] + ch[3], 0, 27, sched)
            for n in range(16):
                lwait(n)
                a(qk(nxt, n, vr(NEGM, 16)))
                a(kread(n, n + 8, vK) if n < 8 else kread(n, n - 8, vV))
                for x in sched[n]: a(x)
                if n == 8: updK()
            for n in range(16):
                lwait(n)
                if n == 8: f_sync()
                a(pv(n))
                if n < 8: a(kread(n, n + 8, vV))
                elif name.endswith("M0"): a(kread(n, n - 8, vV))
                else: a(kread(n, n - 8, vK))
                if n == 7: updV()
                if n == 12: g_load()
                for x in sched[16 + n]: a(x)
            if safe:
                a(f"v_cmp_lt_f32 vcc, s53, v{vMX}")
                a("s_add_u32 s51, s51, 1")
                a(f"s_cbranch_vccnz {name}_RS")
                a.label(f"{name}_RET")
            else: a("s_add_u32 s51, s51, 1")
        else:
            for x in chunk_ops(cur, 0): a(x)
            rest = [chunk_ops(cur, 1), chunk_ops(cur, 2), chunk_ops(cur, 3), []]
            a("s_nop 0")
            for n in range(16):
                if n < 8:
                    if n % 2 == 0: a("s_waitcnt lgkmcnt(6)")
                else: a(f"s_waitcnt lgkmcnt({15 - n})")
                if n == 8: f_sync()
                a(pv(n))
                if n < 8: a(kread(n, n + 8, vV))
                if n == 12: g_load()
                v = rest[n // 4]; q = n % 4
                per = -(-len(v) // 4)
                for x in v[q*per:(q+1)*per]: a(x)
                if q == 3: a("s_nop 1")
            a("s_add_u32 s51, s51, 1")
    def fbody(name, cur, kind, ph, role):
        nxt = cur ^ 1
        a.label(name)
        def kr(slot, fr, t): return f"ds_read_b128 {vr(FR + 4*(slot % 8), 4)}, v{vLANE16} offset:{((ph + t) & 3)*16384 + fr*1024}"
        def vrd(slot, fr, t): return f"ds_read_b128 {vr(FR + 4*(slot % 8), 4)}, v{vV} offset:{((ph + t + 2) & 3)*16384 + fr*1024}"
        def sync():
            if role == 'L': a("s_waitcnt vmcnt(8)")
            a("s_barrier")
        def skm(ins, what, n):
            k = 0
            if not OPT.get("k2_noskip"):
                if kind == 'M' and cur == 1: k = 1 if (what == "qk" and n >= 8) else 0
                elif kind == 'M': k = (2 if n < 8 else 3) if what == "qk" else (1 if n >= 8 else 0)
                elif kind == 'L': k = 2 if n < 8 else 3
            if not k: return a(ins)
            if n % 8 == 0:
                a(f"s_cmp_lt_u32 s62, {k}")
                a("s_cselect_b64 vcc, -1, 0")
            a(f"s_cbranch_vccnz {name}_{what}{n}")
            a(ins)
            a.label(f"{name}_{what}{n}")
        dm = {n: [] for n in range(16)}
        if role == 'L' and kind != 'L' and not OPT.get("k2_nodma"):
            dm[8].append(f"s_add_u32 m0, s45, {(ph & 3)*16384}")
            for p in range(4):
                dm[8 + p].append(f"buffer_load_dwordx4 v{vLANE16}, s[28:31], s96 offen offset:{p*1024} lds")
                dm[12 + p].append(f"buffer_load_dwordx4 v{vLANE16}, s[32:35], s97 offen offset:{p*1024} lds")
            dm[11].append(f"s_add_u32 m0, s45, {VBASE + ((ph + 1) & 3)*16384}")
            dm[15] += ["s_mov_b32 s97, s96", "s_add_u32 s96, s96, 16384"]
            dm[8].insert(1, "s_nop 0")
        if role == 'H' and kind == 'U' and ph % 2 == 0 and not OPT.get("nopf"):
            for q, srd in enumerate(("s[20:23]", "s[24:27]", "s[96:99]")):
                dm[12 + q].append(f"buffer_load_dwordx4 {vr((248, 252, 240)[q], 4)}, v{vLANE16}, {srd}, s65 offen")
            dm[15].append(f"s_add_u32 s65, s65, {1 << 20}")
        if kind != 'L':
            sched = {n: [] for n in range(32)}
            ch = [chunk_ops(cur, c) for c in range(4)]
            if kind == 'M':
                spread(ch[0] + ch[1] + ch[2], 0, 16, sched)
                spread(ch[3], 16, 22, sched)
                spread(["s_add_u32 s54, s51, 1"] + mask_ops(nxt), 22, 32, sched)
            else:
                spread(ch[0] + ch[1] + ch[2] + ch[3], 0, 27, sched)
            for n in range(16):
                lwait(n)
                skm(qk(nxt, n, vr(NEGM, 16)), "qk", n)
                a(kr(n, n + 8, 1) if n < 8 else vrd(n, n - 8, 0))
                for x in sched[n]: a(x)
            for n in range(16):
                lwait(n)
                if n == 8: sync()
                skm(pv(n), "pv", n)
                if n < 8: a(vrd(n, n + 8, 0))
                elif kind == 'M' and cur == 0: a(vrd(n, n - 8, 1))
                else: a(kr(n, n - 8, 2))
                for x in dm[n]: a(x)
                for x in sched[16 + n]: a(x)
            a("s_add_u32 s51, s51, 1")
        else:
            f_sync, g_load = sync_and_load(name)
            for x in chunk_ops(cur, 0): a(x)
            rest = [chunk_ops(cur, 1), chunk_ops(cur, 2), chunk_ops(cur, 3), []]
            a("s_nop 0")
            for n in range(16):
                if n < 8:
                    if n % 2 == 0: a("s_waitcnt lgkmcnt(6)")
                else: a(f"s_waitcnt lgkmcnt({15 - n})")
                if n == 8: sync()
                skm(pv(n), "pv", n)
                if n < 8: a(vrd(n, n + 8, 0))
                if n == 12 and role == 'L': g_load()
                v = rest[n // 4]; q = n % 4
                per = -(-len(v) // 4)
                for x in v[q*per:(q+1)*per]: a(x)
                if q == 3: a("s_nop 1")
            a("s_add_u32 s51, s51, 1")
    def floop(P, role):
        P = P + role
        fbody(f"{P}_U0", 0, 'U', 0, role)
        a("s_cmp_ge_u32 s51, s49")
        a(f"s_cbranch_scc1 {P}_M1a")
        fbody(f"{P}_U1", 1, 'U', 1, role)
        fbody(f"{P}_U2", 0, 'U', 2, role)
        a("s_cmp_ge_u32 s51, s49")
        a(f"s_cbranch_scc1 {P}_M1b")
        fbody(f"{P}_U3", 1, 'U', 3, role)
        a(f"s_branch {P}_U0")
        fbody(f"{P}_M1a", 1, 'M', 1, role)
        fbody(f"{P}_M0a", 0, 'M', 2, role)
        fbody(f"{P}_L1a", 1, 'L', 3, role)
        a("s_branch K2F_EPI")
        fbody(f"{P}_M1b", 1, 'M', 3, role)
        fbody(f"{P}_M0b", 0, 'M', 0, role)
        fbody(f"{P}_L1b", 1, 'L', 1, role)
        if role == 'L': a("s_branch K2F_EPI")
    def rescale(name, nxt):
        a.label(f"{name}_RS")
        a("s_nop 7"); a("s_nop 7")
        a(f"v_max_f32 v{vMX}, 0, v{vMX}")
        a(f"v_sub_f32 v{vT0}, 0, v{vMX}")
        a(f"v_exp_f32 v{vT0}, v{vT0}")
        for i in range(32): a(f"v_sub_f32 v{SB[nxt]+i}, v{SB[nxt]+i}, v{vMX}")
        for i in range(16): a(f"v_sub_f32 v{NEGM+i}, v{NEGM+i}, v{vMX}")
        for i in range(64): a(f"v_mul_f32 v{O0+i}, v{O0+i}, v{vT0}")
        a(f"v_mul_f32 v{vL}, v{vL}, v{vT0}")
        a(f"v_mul_f32 v{vL2}, v{vL2}, v{vT0}")
        a("s_nop 1")
        a(f"s_branch {name}_RET")
    def attn(P, safe):
        a("s_cmp_eq_u32 s60, 0")
        a(f"s_cbranch_scc1 {P}_NOS2")
        a("s_mov_b32 s64, 2")
        dma_stage()
        a.label(f"{P}_NOS2")
        for n in range(8): a(kread(n, n, vLANE16))
        if not safe:
            for db in range(4):
                for t in range(2):
                    for i in range(4):
                        r = QA(db) + 8*t + 2*i
                        a(f"v_cvt_pk_bf16_f32 v{Q0 + (2*db + t)*4 + i}, v{r}, v{r+1}")
            a(f"v_mov_b32 v{vT0}, 0")
            a(f"v_mov_b32 v{vT1}, {FLAG}")
            a(f"ds_write_b32 v{vT1}, v{vT0}")
        a(f"v_add_u32 v{vK}, 16384, v{vLANE16}")
        a(f"v_add_u32 v{vV}, {VBASE + 2*16384}, v{vLANE16}")
        a("s_mov_b32 s51, 0")
        a(f"s_mov_b32 s52, {hexf(-1e30)}")
        a(f"s_mov_b32 s53, {hexf(THR)}")
        a("s_waitcnt lgkmcnt(0)")
        zero = [f"v_mov_b32 v{O0+i}, 0" for i in range(64)] + [f"v_mov_b32 v{vL}, 0", f"v_mov_b32 v{vL2}, 0"]
        for n in range(16):
            if n >= 8: a(f"s_waitcnt lgkmcnt(7)")
            a(qk(0, n, "0"))
            a(kread(n, n + 8, vLANE16) if n < 8 else kread(n, n - 8, vK))
            for x in zero[4*n:4*n+4]: a(x)
        for x in zero[64:]: a(x)
        a("s_mov_b32 s54, 0")
        a("s_nop 7"); a("s_nop 3")
        a("s_cmp_eq_u32 s61, 2")
        a(f"s_cbranch_scc0 {P}_NOM")
        for x in mask_ops(0): a(x)
        a.label(f"{P}_NOM")
        for x in max_ops(0): a(x)
        for i in range(16): a(f"v_sub_f32 v{NEGM+i}, 0, v{vMX}")
        for i in range(32): a(f"v_sub_f32 v{SB[0]+i}, v{SB[0]+i}, v{vMX}")
        if OPT.get("stamp") == "2" and not safe: a.stamp("2"); a("s_waitcnt lgkmcnt(0)")
        a("s_sub_u32 s49, s61, 3")
        if safe:
            a("s_cmp_eq_u32 s61, 2")
            a(f"s_cbranch_scc1 {P}_M0")
            body(f"{P}_U0", 0, 'U', safe)
            a("s_cmp_ge_u32 s51, s49")
            a(f"s_cbranch_scc1 {P}_M1")
            body(f"{P}_U1", 1, 'U', safe)
            a(f"s_branch {P}_U0")
            body(f"{P}_M1", 1, 'M', safe)
            body(f"{P}_M0", 0, 'M', safe)
            body(f"{P}_L1", 1, 'L', safe)
        else:
            a(f"v_add_u32 v{vV}, {VBASE}, v{vLANE16}")
            a("s_add_u32 s96, s46, 65536")
            a("s_add_u32 s97, s46, 49152")
            a("s_cmp_eq_u32 s60, 0")
            a(f"s_cbranch_scc1 {P}H_PRE")
            a("s_cmp_eq_u32 s61, 2")
            a(f"s_cbranch_scc1 {P}L_M0b")
            floop(P, 'L')
            a.label(f"{P}H_PRE")
            a.srd(20, 8, 9, 4096*640*2)
            a.srd(24, 10, 11, 2048*1728*2)
            a.srd(96, 12, 13, 2048*1728*2)
            a("s_lshl_b32 s65, s2, 2")
            a("s_add_u32 s65, s65, s62")
            a("s_lshl_b32 s65, s65, 10")
            floop(P, 'H')
            a.label("K2F_EPI")
        if not safe: a.stamp("2")
        a(f"v_add_f32 v{vL}, v{vL}, v{vL2}")
        a(f"v_mov_b32 v{vT0}, v{vL}")
        a("s_nop 1")
        a(f"v_permlane32_swap_b32 v{vL}, v{vT0}")
        a(f"v_add_f32 v{vL}, v{vL}, v{vT0}")
        a(f"v_mov_b32 v{vMX}, v{vL}")
        a(f"v_rcp_f32 v{vL}, v{vL}")
        a("s_lshl_b32 s55, s63, 18")
        a("s_lshl_b32 s56, s15, 13")
        a("s_add_u32 s55, s55, s56")
        a("s_nop 7")
        for db in range(4):
            for t in range(2):
                d = 96 + (2*db + t)*4
                for i in range(4):
                    r = O0 + 16*db + 8*t + 2*i
                    if not safe:
                        a(f"v_add_f32 v{vMX}, v{vMX}, |v{r}|")
                        a(f"v_add_f32 v{vMX}, v{vMX}, |v{r+1}|")
                    a(f"v_mul_f32 v{r}, v{r}, v{vL}")
                    a(f"v_mul_f32 v{r+1}, v{r+1}, v{vL}")
                    a(f"v_cvt_pk_bf16_f32 v{d+i}, v{r}, v{r+1}")
                if (2*db + t) % 4 == 0 and (2*db + t): a("s_add_u32 s55, s55, 4096")
                a(f"buffer_store_dwordx4 {vr(d, 4)}, v{vLANE16}, s[36:39], s55 offen offset:{((2*db + t) % 4)*1024} {OPT.get('k2_st', 'sc1')}")
        if not safe:
            a(f"v_mov_b32 v{vT0}, {hexf(2.0**100)}")
            a(f"v_cmp_nlt_f32 vcc, v{vMX}, v{vT0}")
            a("s_nop 1")
            a(f"s_cbranch_vccz {P}_LD")
            a(f"v_mov_b32 v{vT0}, 1")
            a(f"v_mov_b32 v{vT1}, {FLAG}")
            a(f"ds_write_b32 v{vT1}, v{vT0}")
        PF = False
        if PF:
            a.label(f"{P}_LD")
            a("s_cmp_ge_u32 s51, s18")
            a(f"s_cbranch_scc1 {P}_FIN")
            a.srd(20, 8, 9, 4096*640*2)
            a.srd(24, 10, 11, 2048*1728*2)
            a.srd(56, 12, 13, 2048*1728*2)
            a("s_lshl_b32 s98, s16, 5")
            a("s_add_u32 s98, s98, s15")
            a("s_lshl_b32 s98, s98, 2")
            a("s_add_u32 s98, s98, s62")
            a("s_lshl_b32 s98, s98, 10")
            a("s_cmp_ge_u32 s16, 4")
            a("s_cselect_b32 s98, 0x40000000, s98")
            f_sync, g_load = sync_and_load(f"{P}_LDY")
            f_sync(); g_load()
            a("s_add_u32 s51, s51, 1")
            def pf():
                for q, srd in enumerate(("s[20:23]", "s[24:27]", "s[56:59]")):
                    a(f"buffer_load_dwordx4 {vr(160 + 4*q, 4)}, v{vLANE16}, {srd}, s98 offen")
                a(f"s_add_u32 s98, s98, {512*1024}")
            pf()
            f_sync, g_load = sync_and_load(f"{P}_LDZ", 11)
            f_sync(); g_load()
            a("s_add_u32 s51, s51, 1")
            a.label(f"{P}_LD2")
            a("s_cmp_ge_u32 s51, s18")
            a(f"s_cbranch_scc1 {P}_FIN")
            pf()
            f_sync, g_load = sync_and_load(f"{P}_LDX", 14)
            f_sync(); g_load()
            a("s_add_u32 s51, s51, 1")
            a(f"s_branch {P}_LD2")
        else:
            a.label(f"{P}_LD")
            a("s_cmp_ge_u32 s51, s18")
            a(f"s_cbranch_scc1 {P}_FIN")
            f_sync, g_load = sync_and_load(f"{P}_LDX")
            f_sync(); g_load()
            a("s_add_u32 s51, s51, 1")
            a(f"s_branch {P}_LD")
        if safe:
            rescale(f"{P}_U0", 1); rescale(f"{P}_U1", 0); rescale(f"{P}_M1", 0); rescale(f"{P}_M0", 1)
        a.label(f"{P}_FIN")
    attn("K2F", False)
    a(f"v_mov_b32 v{vT1}, {FLAG}")
    a("s_waitcnt vmcnt(0) lgkmcnt(0)")
    a("s_barrier")
    a(f"ds_read_b32 v{vT0}, v{vT1}")
    a("s_waitcnt lgkmcnt(0)")
    a(f"v_readfirstlane_b32 s55, v{vT0}")
    a.stamp_out("2", 6, 14)
    a("s_cmp_eq_u32 s55, 0")
    a("s_cbranch_scc1 K2_END")
    for f in [dma_KV("K", 0), dma_KV("K", 1), dma_KV("V", 0), dma_KV("K", 2), dma_KV("V", 1)]: f()
    a("s_waitcnt vmcnt(0)")
    a("s_barrier")
    attn("K2S", True)
    a.label("K2_END")
    a("s_endpgm")
    return a.text()
```
